```python
import torch

def _softmax(x, axis=-1):
    return torch.softmax(x, dim=axis)
def _gelu(x):
    return torch.nn.functional.gelu(x, approximate="tanh")
def _silu(x):
    return torch.nn.functional.silu(x)
def _sigmoid(x):
    return torch.sigmoid(x)
def _layernorm(x, axis=-1, eps=1e-5):
    m = x.mean(dim=axis, keepdim=True)
    v = x.var(dim=axis, keepdim=True, unbiased=False)
    return (x - m) / torch.sqrt(v + eps)
def _scatter_add(tgt, idx, src, axis=0):
    return tgt.clone().index_add_(axis, idx, src)
def _segment_sum(src, seg, n):
    out = torch.zeros((n,) + src.shape[1:], dtype=src.dtype)
    return out.index_add_(0, seg, src)
def _pad(x, pw):
    flat = tuple(v for pair in reversed(pw) for v in pair)
    return torch.nn.functional.pad(x, flat)

kernel_name = 'standalone__gqa_softmax__near_ridge'

def setup_inputs():

    _w = (lambda a: (lambda t: t.to(torch.bfloat16) if t.is_floating_point() else t)(torch.as_tensor(a)))
    B, Hq, Hkv, Sq, Sk, D = 16, 32, 32, 512, 512, 128
    return {
        "q": _w((lambda *s: torch.randn(*s, dtype=torch.bfloat16) * 0.8)(B, Hq, Sq, D)),
        "k": _w((lambda *s: torch.randn(*s, dtype=torch.bfloat16) * 0.8)(B, Hkv, Sk, D)),
        "v": _w((lambda *s: torch.randn(*s, dtype=torch.bfloat16) * 0.05)(B, Hkv, Sk, D)),
    }

def reference(q, k, v):
    B, Hq, Sq, D = q.shape
    Hkv = k.shape[1]
    rep = Hq // Hkv
    k = (lambda x, n, axis: torch.repeat_interleave(x, n, dim=axis))(k, rep, axis=1)
    v = (lambda x, n, axis: torch.repeat_interleave(x, n, dim=axis))(v, rep, axis=1)
    scale = D ** -0.5
    scores = torch.einsum("bhqd,bhkd->bhqk", q, k) * scale
    p = _softmax(scores, axis=-1)
    return torch.einsum("bhqk,bhkd->bhqd", p, v)
```

```python
import re
class I:
    __slots__=('t','k','r','w','c','tag')
    def __init__(s,t,k,r=(),w=(),c=1.0,tag=None):
        s.t=t; s.k=k; s.r=set(r); s.w=set(w); s.c=c; s.tag=tag
def rng(p,a,n): return [f'{p}{i}' for i in range(a,a+n)]
def R(p,a,n): return f'{p}[{a}:{a+n-1}]' if n>1 else f'{p}{a}'
def parse(x):
    m=re.fullmatch(r'-?([vas])\[(\d+):(\d+)\]',x)
    if m: return rng(m.group(1),int(m.group(2)),int(m.group(3))-int(m.group(2))+1)
    m=re.fullmatch(r'-?([vas])(\d+)',x)
    if m: return [m.group(1)+m.group(2)]
    if x in('vcc','m0'): return [x]
    return []
def valu(op,dst,*src,c=1.0,trans=False,extra='',rmw=False):
    r=[]
    for s in src: r+=parse(s)
    w=parse(dst)
    if rmw: r+=w
    return I(f'{op} {dst}, '+', '.join(src)+(' '+extra if extra else ''),'trans' if trans else 'valu',r,w,c)
def mfma(d,a,b,c):
    return I(f'v_mfma_f32_32x32x16_bf16 {d}, {a}, {b}, {c}','mfma',parse(a)+parse(b)+parse(c),parse(d),2.0)
def salu(t,r=(),w=()): return I(t,'salu',r,w,1.0)
def dsr(op,dst,addr,off): return I(f'{op} {dst}, {addr} offset:{off}','dsr',parse(addr),parse(dst),1.0)
def dsw(op,addr,src,off): return I(f'{op} {addr}, {src} offset:{off}','dsw',parse(addr)+parse(src),(),1.5)
def dma(voff,srd,soff,off,tag,nt=''):
    return I(f'buffer_load_dwordx4 {voff}, {srd}, {soff} offen offset:{off}{nt} lds','dma',parse(voff)+parse(srd)+parse(soff)+['m0'],(),2.0,tag)
def store(src,voff,srd,soff,off,nt=''):
    return I(f'buffer_store_dwordx4 {src}, {voff}, {srd}, {soff} offen offset:{off}{nt}','store',parse(src)+parse(voff)+parse(srd)+parse(soff),(),2.0,'st')
def wait(t,tag=None): return I(t,'wait',(),(),1.0,tag)
def nop(n): return I(f's_nop {n}','nop',(),(),1.0,n)
def label(n): return I(n+':','label',(),(),0.0)
def states(i):
    if i.k=='label': return 0
    if i.k=='nop': return i.tag+1
    return 1
def check_hazards(seq,name=''):
    errs=[]
    n=len(seq)
    for x,p in enumerate(seq):
        if p.k in('label','wait','nop','dsr','dsw','dma'):
            continue
        d=0
        for y in range(x+1,min(n,x+40)):
            q=seq[y]
            need=0
            isv=q.k in('valu','trans')
            if p.k in('valu','trans'):
                if q.k=='mfma' and (p.w&q.r): need=2
                if p.k=='trans' and q.k=='valu' and (p.w&q.r): need=max(need,1)
                if 'permlane' in q.t and (p.w&(q.r|q.w)): need=max(need,2)
                if 'readfirstlane' in q.t and (p.w&q.r): need=max(need,1)
                sw={z for z in p.w if z[0]=='s' or z=='vcc'}
                if sw and isv and (sw&q.r): need=max(need,2)
                if sw and q.k in('dma','store') and (sw&q.r): need=max(need,5)
            if p.k=='mfma':
                if q.k=='mfma':
                    pc=parse(p.t.split(', ')[-1]); qc=parse(q.t.split(', ')[-1])
                    qab=set(parse(q.t.split(', ')[1])+parse(q.t.split(', ')[2]))
                    if p.w&qab: need=12
                    if (p.w&set(qc)) and set(qc)!=p.w: need=max(need,10)
                    if (p.w&q.w) and not(set(qc)==p.w): need=max(need,10)
                else:
                    if p.w&(q.r|q.w): need=12
                    pc=set(parse(p.t.split(', ')[-1]))
                    if isv and (pc&q.w): need=max(need,7)
            if p.k=='store' and (isv or q.k in('mfma','dsr')) and (p.r&q.w): need=max(need,2)
            if p.k=='salu' and 'm0' in p.w and q.k=='dma': need=max(need,1)
            if need>d: errs.append(f'{name}: [{x}] {p.t}  ->  [{y}] {q.t}  dist {d} need {need}')
            d+=states(q)
            if d>=13: break
    return errs
```

```python
import sys
from lib import *
OPT=dict(ntq='',ntkv='',nto='',thr='0x44800000')
for a in sys.argv[2:]:
    k,v=a.split('='); OPT[k]=v.replace('_',' ')
def O(blk,b): return 64*blk+16*b
def S(par,blk): return 128+32*par+16*blk
def P(par,blk): return 192+16*par+8*blk
T=[224+i for i in range(8)]
MC=[232,233]; L=[234,235]; TS=[236,237]
KA=[238+i for i in range(8)]; VA=[246+i for i in range(4)]; KD=[250+i for i in range(4)]; VD=254; VX=255
QC=0; QN=64; KF=128; VF=160
SRDQ,SRDK,SRDV,SRDO='s[4:7]','s[8:11]','s[12:15]','s[16:19]'
sW4,sK,sV,sQ,sO,dK4,dK5,sIT,sC,sT,sQS,sTMP,sOB,sTMP2='s20','s21','s22','s23','s24','s25','s26','s27','s28','s29','s30','s31','s32','s33'
KRING=0; VRING=65536; STG=131072
JUMP=127*131072
def v(n): return f'v{n}'
def kslot(u): return (u+1)%8
def vslot(u): return u%8
def qk_mfmas(j1,useQN):
    par=j1%2; qb=QN if useQN else QC; out=[]
    for s in range(8):
        for blk in range(2):
            d=R('v',S(par,blk),16)
            out.append(mfma(d,R('a',KF+4*s,4),R('a',qb+32*blk+4*s,4),'0' if s==0 else d))
    return out
def pv_mfmas(j,first):
    par=j%2; out=[]
    for t in range(2):
        for b in range(4):
            for blk in range(2):
                d=R('v',O(blk,b),16)
                out.append(mfma(d,R('a',VF+4*(4*t+b),4),R('v',P(par,blk)+4*t,4),'0' if (first and t==0) else d))
    return out
def k_reads(u):
    return [dsr('ds_read_b128',R('a',KF+4*s,4),v(KA[s]),KRING+kslot(u)*8192) for s in range(8)]
def v_reads(u):
    out=[]
    for t in range(2):
        for b in range(4):
            for uu in range(2):
                out.append(dsr('ds_read_b64_tr_b16',R('a',VF+4*(4*t+b)+2*uu,2),v(VA[b]),vslot(u)*8192+(16*t+8*uu)*256))
    return out
def k_dma(Tp):
    inc = dK4 if Tp==4 else dK5 if Tp==5 else '0x4000'
    pre=[salu(f's_add_u32 {sK}, {sK}, {inc}',[sK],[sK]), salu(f's_add_u32 m0, {sW4}, {KRING+((2*Tp)%8)*8192}',[sW4],['m0'])]
    return pre,[dma(v(KD[i]),SRDK,sK,1024*i,f'K{Tp}',OPT['ntkv']) for i in range(4)]
def v_dma(Tp):
    inc = hex(0x4000+JUMP) if Tp==5 else '0x4000'
    pre=[salu(f's_add_u32 {sV}, {sV}, {inc}',[sV],[sV]), salu(f's_add_u32 m0, {sW4}, {VRING+((2*Tp+6)%8)*8192}',[sW4],['m0'])]
    return pre,[dma(v(VD),SRDV,sV,1024*i,f'V{Tp}',OPT['ntkv']) for i in range(4)]
def q_dma(blk,g,ldsbase=None):
    pre=[salu(f's_add_u32 {sTMP}, {sQ}, {blk*8192+g*4096}',[sQ],[sTMP]),
         salu(f's_add_u32 m0, {sQS}, {g*4096}',[sQS],['m0']) if ldsbase is None else salu(f's_add_u32 m0, {ldsbase}, {g*4096}',[ldsbase],['m0'])]
    return pre,[dma(v(KD[i]),SRDQ,sTMP,1024*i,f'Q{blk}',OPT['ntq']) for i in range(4)]
def q_reads(blk,base=sQS):
    out=[]
    for s in range(8):
        t=S(1,0)+s
        out.append([valu('v_add_u32',v(t),base,v(KA[s])), dsr('ds_read_b128',R('a',QN+32*blk+4*s,4),v(t),0)])
    return out
def q_moves(): return [valu('v_accvgpr_mov_b32',f'a{QC+i}',f'a{QN+i}') for i in range(64)]
def pair_ops(par,k):
    blk,i=k//8,k%8; a,b=T[2*(k%4)],T[2*(k%4)+1]; s=S(par,blk)+2*i
    f=[valu('v_fma_f32',v(a),v(s),sC,f'-v{MC[blk]}'),valu('v_fma_f32',v(b),v(s+1),sC,f'-v{MC[blk]}')]
    e=[valu('v_exp_f32',v(a),v(a),c=2.0,trans=True),valu('v_exp_f32',v(b),v(b),c=2.0,trans=True)]
    if i==0: ad=[valu('v_add_f32',v(TS[blk]),v(a),v(b))]
    else: ad=[valu('v_add_f32',v(TS[blk]),v(TS[blk]),v(a)),valu('v_add_f32',v(TS[blk]),v(TS[blk]),v(b))]
    cv=valu('v_cvt_pk_bf16_f32',v(P(par,blk)+i),v(a),v(b),c=1.15)
    return f,e,ad,cv
def rowmax(par,blk,t,t2):
    s=S(par,blk); out=[valu('v_max3_f32',v(t),v(s),v(s+1),v(s+2))]
    for i in range(3,15,2): out.append(valu('v_max3_f32',v(t),v(t),v(s+i),v(s+i+1)))
    out.append(valu('v_max_f32',v(t),v(t),v(s+15)))
    out.append(valu('v_mov_b32',v(t2),v(t)))
    return out
def swapmax(t,t2): return [I(f'v_permlane32_swap_b32 {v(t)}, {v(t2)}','valu',[v(t),v(t2)],[v(t),v(t2)]), valu('v_max_f32',v(t),v(t),v(t2))]
def softmax_stream(j):
    par=j%2; out=[]
    if j==0:
        a=rowmax(par,0,T[0],T[2]); b=rowmax(par,1,T[1],T[3])
        out+=a[:2]
        for x in range(2,len(a)): out+=[a[x],b[x-2]]
        out+=b[-2:]
        sa=swapmax(T[0],T[2]); sb=swapmax(T[1],T[3])
        out+=[sa[0],nop(0),sb[0],sa[1],sb[1],valu('v_mul_f32',v(MC[0]),sC,v(T[0])),valu('v_mul_f32',v(MC[1]),sC,v(T[1]))]
    ops=[pair_ops(par,k) for k in range(16)]
    for k in range(18):
        if k<16: out+=ops[k][0]
        if 1<=k<=16: out+=ops[k-1][1]
        if 2<=k<=17:
            out+=ops[k-2][2]
            if k-2<14: out.append(ops[k-2][3])
    tail=[ops[14][3],ops[15][3]]
    return out,tail
def check_ops(j,tail):
    if j==0:
        return [tail[0],tail[1],valu('v_mov_b32',v(L[0]),v(TS[0])),valu('v_mov_b32',v(L[1]),v(TS[1]))]
    return [tail[0],valu('v_max_f32',v(VX),v(TS[0]),v(TS[1])),tail[1],
            valu('v_cmp_lt_f32','vcc',sT,v(VX)),I(f's_cbranch_vccnz RARE_{j}','salu',['vcc'],[]),label(f'RET_{j}'),
            valu('v_add_f32',v(L[0]),v(L[0]),v(TS[0])),valu('v_add_f32',v(L[1]),v(L[1]),v(TS[1]))]
def rl_ops():
    a,b=S(1,0),S(1,0)+1
    return [valu('v_mov_b32',v(a),v(L[0])),valu('v_mov_b32',v(b),v(L[1])),nop(1),
            I(f'v_permlane32_swap_b32 {v(L[0])}, {v(a)}','valu',[v(L[0]),v(a)],[v(L[0]),v(a)]),
            I(f'v_permlane32_swap_b32 {v(L[1])}, {v(b)}','valu',[v(L[1]),v(b)],[v(L[1]),v(b)]),
            valu('v_add_f32',v(L[0]),v(L[0]),v(a)),valu('v_add_f32',v(L[1]),v(L[1]),v(b)),
            valu('v_rcp_f32',v(L[0]),v(L[0]),c=2.0,trans=True),valu('v_rcp_f32',v(L[1]),v(L[1]),c=2.0,trans=True)]
def cost(x): return sum(i.c for i in x)
def weave(mf,misc,stream,first_gap=0):
    n=len(mf); out=[]
    tot=cost(stream)+sum(cost(m) for m in misc[first_gap:]); ng=n-first_gap
    done=0.0; si=0
    for g in range(n):
        if mf[g] is not None: out.append(mf[g])
        out+=misc[g]
        if g<first_gap: continue
        done+=cost(misc[g]); target=tot*(g-first_gap+1)/ng
        while si<len(stream) and (done+stream[si].c*0.5<=target or g==n-1):
            out.append(stream[si]); done+=stream[si].c; si+=1
    return out
def spread(misc,ops,g0,g1):
    n=len(ops)
    for x,o in enumerate(ops):
        g=g0+(x*(g1-g0+1))//n
        misc[g]+= o if isinstance(o,list) else [o]
def step_pair(j,mfY,miscY,mfX,miscX,endY,endX):
    st,tail=softmax_stream(j)
    mf=mfY+mfX; misc=miscY+miscX
    misc[15]=misc[15]
    seq=weave(mf,misc,st,first_gap=1)
    if mfX[0] is not None:
        ix=seq.index(mfX[0])
    else: ix=len(seq)
    y,x=seq[:ix],seq[ix:]
    return y+endY, x+check_ops(j,tail)+endX
def miscY_for(j,moves):
    m=[[] for _ in range(16)]
    spread(m,k_reads((j+2)%16),1,8)
    nQafter=0
    if j%2==1: pre,d=k_dma(((j+1)//2)%8)
    else: pre,d=v_dma(j//2)
    m[0]+=pre; spread(m,d,2,11)
    if j in(0,1):
        pre,d=q_dma(0,j); m[11]+=pre; spread(m,d,12,15)
    if j==8:
        pre,d=q_dma(1,0); m[11]+=pre; spread(m,d,12,15)
    if j in(7,13):
        spread(m,q_reads(0 if j==7 else 1),9,14); nQafter=8
    if j==15:
        spread(m,[[o] for o in rl_ops()],1,12)
    spread(m,moves,0,15) if moves else None
    return m,[wait(f's_waitcnt lgkmcnt({nQafter})')]
def miscX_for(j,moves):
    m=[[] for _ in range(16)]
    vr=v_reads(j)
    spread(m,vr[:8],0,3); spread(m,vr[8:],4,11)
    if j==9:
        pre,d=q_dma(1,1); m[11]+=pre; spread(m,d,12,15)
    spread(m,moves,0,15) if moves else None
    if j%2==1: end=[wait('s_waitcnt vmcnt(NN) lgkmcnt(0)',f'B{((j+1)//2)%8}'),I('s_barrier','bar')]
    else: end=[wait('s_waitcnt lgkmcnt(0)')]
    return m,end
def epilogue():
    t0=S(1,0)
    WA=[t0+i for i in range(8)]; RA=t0+8; SV=[t0+9,t0+10]; LN=t0+11; X=t0+12
    e=[]
    e+=[valu('v_mbcnt_lo_u32_b32',v(LN),'-1','0'),valu('v_mbcnt_hi_u32_b32',v(LN),'-1',v(LN)),
        valu('v_and_b32',v(X),'31',v(LN)),
        valu('v_lshlrev_b32',v(WA[0]),'7',v(X)),
        valu('v_and_b32',v(X),'7',v(X)),valu('v_lshl_add_u32',v(WA[0]),v(X),'4',v(WA[0])),
        valu('v_lshrrev_b32',v(X),'5',v(LN)),valu('v_lshl_add_u32',v(WA[0]),v(X),'3',v(WA[0])),
        valu('v_add_u32',v(WA[0]),sQS,v(WA[0]))]
    for p in range(1,8): e.append(valu('v_xor_b32',v(WA[p]),str(16*p) if 16*p<=64 else hex(16*p),v(WA[0])))
    e+=[valu('v_lshrrev_b32',v(X),'3',v(LN)),
        valu('v_and_b32',v(LN),'7',v(LN)),
        valu('v_lshlrev_b32',v(SV[0]),'8',v(X)),valu('v_lshl_add_u32',v(SV[0]),v(LN),'4',v(SV[0])),
        valu('v_add_u32',v(SV[1]),'0x1000',v(SV[0])),
        valu('v_xor_b32',v(LN),v(X),v(LN)),valu('v_lshlrev_b32',v(RA),'7',v(X)),
        valu('v_lshl_add_u32',v(RA),v(LN),'4',v(RA)),valu('v_add_u32',v(RA),sQS,v(RA)),
        salu(f's_add_u32 {sOB}, {sO}, 0x2000',[sO],[sOB])]
    def conv(p):
        blk,dh=p//2,p%2; o=[]
        sel='op_sel_hi:[1,0]' if blk==0 else 'op_sel:[0,1] op_sel_hi:[1,1]'
        for bb in range(2):
            base=O(blk,2*dh+bb)
            for g in range(4):
                r=base+4*g
                o+=[valu('v_pk_mul_f32',R('v',r,2),R('v',r,2),R('v',L[0],2),extra=sel),
                    valu('v_pk_mul_f32',R('v',r+2,2),R('v',r+2,2),R('v',L[0],2),extra=sel)]
            for g in range(4):
                r=base+4*g
                o+=[valu('v_cvt_pk_bf16_f32',v(r),v(r),v(r+1)),valu('v_cvt_pk_bf16_f32',v(r+1),v(r+2),v(r+3))]
            for g in range(4):
                o.append(dsw('ds_write_b64',v(WA[4*bb+g]),R('v',base+4*g,2),(p%2)*4096))
        for i in range(4): o.append(dsr('ds_read_b128',R('v',O(blk,2*dh)+4*i,4),v(RA),(p%2)*4096+1024*i))
        return o
    def sto(p):
        blk,dh=p//2,p%2
        return [store(R('v',O(blk,2*dh)+4*i,4),v(SV[i//2]),SRDO,sO if blk==0 else sOB,dh*128+(i%2)*2048,OPT['nto']) for i in range(4)]
    e+=conv(0)+conv(1)+[wait('s_waitcnt lgkmcnt(12)')]+sto(0)+conv(2)+[wait('s_waitcnt lgkmcnt(12)')]+sto(1)+conv(3)+[wait('s_waitcnt lgkmcnt(12)')]+sto(2)+[wait('s_waitcnt lgkmcnt(0)')]+sto(3)
    e+=[nop(1)]
    return e
def rare(j):
    par=j%2; e=[label(f'RARE_{j}'),nop(7),nop(7)]
    for blk in range(2):
        t,t2,al=T[0],T[1],T[2]
        e+=rowmax(par,blk,t,t2)+[nop(1)]+swapmax(t,t2)
        e+=[valu('v_mul_f32',v(t),sC,v(t)),valu('v_max_f32',v(t),v(t),v(MC[blk])),valu('v_sub_f32',v(al),v(MC[blk]),v(t)),
            valu('v_exp_f32',v(al),v(al),trans=True),valu('v_mov_b32',v(MC[blk]),v(t)),nop(0),valu('v_mul_f32',v(L[blk]),v(L[blk]),v(al))]
        for r in range(64*blk,64*blk+64): e.append(valu('v_mul_f32',v(r),v(r),v(al)))
        for i in range(8):
            f,ex,ad,cv=pair_ops(par,blk*8+i)
            e+=f+ex+[nop(0)]+ad+[cv]
    e+=[nop(1),I(f's_branch RET_{j}','salu')]
    return e
def build_loop():
    mv=q_moves(); seq=[]
    phases={}
    for j in range(16):
        jm=(j-1)%16
        mvY=[[x] for x in mv[8*(2*jm+1):8*(2*jm+1)+8]] if 0<=jm<=3 else []
        mvX=[[x] for x in mv[8*(2*j):8*(2*j)+8]] if 0<=j<=3 else []
        mY,eY=miscY_for(jm,mvY); mX,eX=miscX_for(j,mvX)
        y,x=step_pair(j,pv_mfmas(jm,jm==0),mY,qk_mfmas((j+1)%16,useQN=(j==15 or j<=3)),mX,eY,eX)
        phases[('Y',jm)]=y; phases[('X',j)]=x
    return phases
def fix_vmcnt(cyc):
    vm=[(x,i) for x,i in enumerate(cyc) if i.k in('dma','store')]
    n=len(cyc)
    for x,i in enumerate(cyc):
        if i.k=='wait' and i.tag and i.tag[0]=='B':
            Tb=int(i.tag[1:]); need={f'K{(Tb-3)%8}',f'V{(Tb-3)%8}'}
            if Tb==4: need.add('Q0')
            if Tb==7: need.add('Q1')
            cnt=0; found=set(); y=x
            best=None
            for step in range(1,n):
                q=cyc[(x-step)%n]
                if q.k in('dma','store'):
                    if q.tag in need and best is None: best=cnt
                    cnt+=1
                    if best is not None: break
            i.t=i.t.replace('NN',str(best));
            assert best<=63
def prologue():
    e=[]
    s=lambda t: e.append(salu(t))
    s('s_cmp_ge_u32 s2, 256'); e.append(I('s_cbranch_scc1 DONE','salu'))
    s('s_load_dwordx4 s[36:39], s[0:1], 0'); s('s_load_dwordx4 s[40:43], s[0:1], 16')
    e.append(valu('v_lshrrev_b32','v1','6','v0')); e.append(nop(0))
    e.append(I('v_readfirstlane_b32 s34, v1','valu',['v1'],['s34']))
    e.append(valu('v_and_b32','v0','63','v0'))
    ln='v0'; a,b,c_,d='v1','v2','v3','v4'
    e+=[valu('v_and_b32',a,'31',ln),valu('v_lshrrev_b32',b,'5',ln),valu('v_and_b32',c_,'15',ln)]
    for s_ in range(8):
        e+=[valu('v_or_b32',d,str(2*s_),b),valu('v_xor_b32',d,d,c_),valu('v_lshlrev_b32',d,'4',d),valu('v_lshl_add_u32',v(KA[s_]),a,'8',d)]
    e+=[valu('v_lshrrev_b32',a,'2',c_),valu('v_lshl_add_u32',b,b,'2',a),valu('v_lshlrev_b32',b,'8',b),
        valu('v_bfe_u32',d,ln,'4','1'),valu('v_lshl_add_u32',b,d,'5',b),valu('v_and_b32',d,'3',ln),valu('v_lshl_add_u32',b,d,'3',b),
        valu('v_add_u32',b,hex(VRING),b)]
    for bk in range(4):
        e+=[valu('v_xor_b32',d,str(bk),a),valu('v_lshl_add_u32',v(VA[bk]),d,'6',b)]
    e+=[valu('v_lshrrev_b32',a,'4',ln),valu('v_lshlrev_b32',b,'8',a)]
    for i in range(4):
        e+=[valu('v_or_b32',d,str(4*i),a),valu('v_xor_b32',d,d,c_),valu('v_lshl_add_u32',v(KD[i]),d,'4',b)]
    e+=[valu('v_lshrrev_b32',d,'2',c_),valu('v_xor_b32',d,d,a),valu('v_lshl_add_u32',d,d,'6',b),valu('v_and_b32',a,'3',ln),valu('v_lshl_add_u32',v(VD),a,'4',d)]
    s('s_and_b32 s35, s2, 7'); s('s_lshr_b32 s44, s2, 3'); s('s_and_b32 s45, s44, 1'); s('s_lshr_b32 s44, s44, 1')
    s('s_lshl_b32 s35, s35, 4'); s('s_add_u32 s35, s35, s44')
    s('s_lshl_b32 s35, s35, 17')
    s(f's_lshl_b32 {sW4}, s34, 12')
    s(f's_lshl_b32 {sQS}, s34, 13'); s(f's_add_u32 {sQS}, {sQS}, {STG}')
    s('s_lshl_b32 s45, s45, 16'); s('s_lshl_b32 s44, s34, 14'); s('s_add_u32 s45, s45, s44'); s(f's_add_u32 {sQ}, s35, s45')
    s(f's_mov_b32 {sO}, 0x7f000000')
    s(f's_mov_b32 {sC}, 0x3e0293ee'); s(f's_mov_b32 {sT}, {OPT["thr"]}'); s(f's_mov_b32 {sIT}, -1')
    s(f's_mov_b32 s49, {hex(0x4000+JUMP)}'); s('s_movk_i32 s50, 0x4000'); s('s_cmp_ge_u32 s34, 2'); s(f's_cselect_b32 {dK4}, s49, s50'); s(f's_cselect_b32 {dK5}, s50, s49')
    e.append(valu('v_mov_b32',v(VX),'0'))
    e.append(wait('s_waitcnt lgkmcnt(0)'))
    for srd,src in((4,36),(8,38),(12,40),(16,42)):
        s(f's_mov_b32 s{srd}, s{src}'); s(f's_and_b32 s{srd+1}, s{src+1}, 0xffff'); s(f's_mov_b32 s{srd+2}, 0x4000000'); s(f's_mov_b32 s{srd+3}, 0x20000')
    s(f's_lshl_b32 s46, s34, 13'); s(f's_add_u32 s46, s46, {VRING+4*8192}')
    for g in range(2):
        pre,d_=q_dma(0,g); e+=pre+[nop(0)]+d_
    for g in range(2):
        pre,d_=q_dma(1,g,'s46'); e+=pre+[nop(0)]+d_
    s('s_and_b32 s47, s34, 1'); s('s_lshl_b32 s47, s47, 7')
    e+=[nop(0),valu('v_xor_b32','v5','s47',v(KD[0])),valu('v_xor_b32','v6','s47',v(KD[1]))]
    s('s_lshl_b32 s47, s34, 11'); s(f's_add_u32 {sTMP}, s35, s47'); e.append(salu(f's_add_u32 m0, s47, {KRING+kslot(0)*8192}',[],['m0'])); e.append(nop(0))
    e+=[dma('v5',SRDK,sTMP,0,'K0p',OPT['ntkv']),dma('v6',SRDK,sTMP,1024,'K0p',OPT['ntkv'])]
    s('s_lshr_b32 s47, s34, 1'); s('s_add_u32 s47, s47, 1'); s('s_lshl_b32 s47, s47, 13'); s('s_and_b32 s48, s34, 1'); s('s_lshl_b32 s48, s48, 12')
    s(f's_add_u32 {sK}, s35, s47'); s(f's_add_u32 {sK}, {sK}, s48'); s(f's_add_u32 {sV}, s35, {sW4}')
    for Tp in(5,6):
        for fn,reg in((k_dma,sK),(v_dma,sV)):
            pre,d_=fn(Tp)
            e+= (pre[1:] if Tp==5 else pre)+[nop(0)]+d_
    e.append(wait('s_waitcnt vmcnt(16)'))
    for blk,base in((0,sQS),(1,'s46')):
        for x in q_reads(blk,base): e+=x
        e.append(wait('s_waitcnt lgkmcnt(0)'))
    e.append(I('s_barrier','bar'))
    e+=k_reads(0)
    for fn in(k_dma,v_dma):
        pre,d_=fn(7); e+=pre+[nop(0)]+d_
    e.append(wait('s_waitcnt lgkmcnt(0)'))
    e+=qk_mfmas(0,True)
    e+=[wait('s_waitcnt vmcnt(16)'),I('s_barrier','bar')]
    mY,eY=miscY_for(15,[])
    mY[1:13]=[[i for i in g if i.k in('dsr','dma','salu')] for g in mY[1:13]]
    st,tail=softmax_stream(0)
    return e,mY,eY
def main():
    ph=build_loop()
    epi=epilogue()
    top=[label('LOOP'),salu(f's_cmp_lt_i32 {sIT}, 0'),I('s_cbranch_scc1 SKIP','salu')]
    mid=[label('AFTER'),salu(f's_add_u32 {sIT}, {sIT}, 1'),salu(f's_cmp_eq_u32 {sIT}, 4'),I('s_cbranch_scc1 DONE','salu'),
         salu(f's_add_u32 {sQ}, {sQ}, 0x1000000',[sQ],[sQ])]
    mid.insert(4,salu(f's_mov_b32 {sO}, {sQ}',[sQ],[sO]))
    body=[]
    for j in range(16):
        body+=ph[('X',j)]+ph[('Y',j)]
    cyc=top+epi+mid+body
    fix_vmcnt(cyc)
    pro,mY,eY=prologue()
    y15=[i for i in ph[('Y',15)] if i.k!='mfma']
    rl_t={o.t for o in rl_ops()}
    drop=lambda i: (i.w&{v(L[0]),v(L[1]),v(S(1,0)),v(S(1,0)+1)}) and i.k in('valu','trans')
    y15p=[nop(7),nop(7)]+[I(i.t,i.k,i.r,i.w,i.c,i.tag) for i in y15 if not drop(i)]
    skip=[label('SKIP')]+[store('v[0:3]',v(VX),SRDO,sO,0) for _ in range(16)]+[I('s_branch AFTER','salu')]
    allc=pro+y15p+[I('s_branch LOOP','salu')]
    errs=check_hazards(pro+y15p,'pro')+check_hazards(cyc+cyc[:60],'loop')
    rr=[]
    for j in range(1,16):
        r=rare(j); errs+=check_hazards(r,f'rare{j}'); rr+=r
    for x in errs: print('HAZARD',x,file=sys.stderr)
    txt=[]
    hdr=open('standalone__gqa_softmax__near_ridge.s.ref').read().split('\n')
    for l in hdr[:11]:
        if l.startswith('; @launch'): l='; @launch grid=(256,1,1) block=(256,1,1) lds=163840'
        if l.startswith(';'): txt.append(l)
    N='standalone__gqa_softmax__near_ridge_kernel'
    txt+=['.amdgcn_target "amdgcn-amd-amdhsa--gfx950"','.text',f'.globl {N}','.p2align 8',f'.type {N},@function',f'{N}:']
    def emit(seq):
        for i in seq: txt.append(i.t if i.k=='label' else '  '+i.t)
    emit(allc);
    txt.append('.p2align 6'); emit(cyc); txt.append('  s_branch LOOP')
    emit([I(f'v_mov_b32 {v(VX)}, 0','valu')] and []); emit(skip); emit(rr)
    txt+=['DONE:','  s_endpgm','.section .rodata,"a"','.p2align 6',f'.amdhsa_kernel {N}','  .amdhsa_next_free_vgpr 448','  .amdhsa_next_free_sgpr 64',
          '  .amdhsa_accum_offset 256','  .amdhsa_group_segment_fixed_size 0','  .amdhsa_kernarg_size 48','  .amdhsa_user_sgpr_count 2',
          '  .amdhsa_user_sgpr_kernarg_segment_ptr 1','  .amdhsa_system_sgpr_workgroup_id_x 1','.end_amdhsa_kernel','']
    open(sys.argv[1],'w').write('\n'.join(txt))
    nm=sum(1 for i in cyc if i.k=='mfma'); print('loop instrs',len(cyc),'mfma',nm,'cost units',sum(i.c for i in cyc), [i.t for i in cyc if i.k=='wait' and i.tag],file=sys.stderr)
main()
```

```python
import sys
from lib import *
OPT=dict(ntq='',ntkv='',nto='',thr='0x44800000')
for a in sys.argv[2:]:
    k,v=a.split('='); OPT[k]=v.replace('_',' ')
def O(blk,b): return 64*blk+16*b
def S(par,blk): return 128+32*par+16*blk
def P(par,blk): return 192+16*par+8*blk
T=[224+i for i in range(8)]
MC=[232,233]; L=[234,235]; TS=[236,237]
KA=[238+i for i in range(8)]; VA=[246+i for i in range(4)]; KD=[250+i for i in range(4)]; VD=254; VX=255
QC=0; QN=64; KF=128; VF=160
SRDQ,SRDK,SRDV,SRDO='s[4:7]','s[8:11]','s[12:15]','s[16:19]'
sW4,sK,sV,sQ,sO,dK4,dK5,sIT,sC,sT,sQS,sTMP,sOB,sTMP2='s20','s21','s22','s23','s24','s25','s26','s27','s28','s29','s30','s31','s32','s33'
KRING=0; VRING=65536; STG=131072
JUMP=127*131072
def v(n): return f'v{n}'
def kslot(u): return (u+1)%8
def vslot(u): return u%8
def qk_mfmas(j1,useQN):
    par=j1%2; qb=QN if useQN else QC; out=[]
    for s in range(8):
        for blk in range(2):
            d=R('v',S(par,blk),16)
            out.append(mfma(d,R('a',KF+4*s,4),R('a',qb+32*blk+4*s,4),'0' if s==0 else d))
    return out
def pv_mfmas(j,first):
    par=j%2; out=[]
    for t in range(2):
        for b in range(4):
            for blk in range(2):
                d=R('v',O(blk,b),16)
                out.append(mfma(d,R('a',VF+4*(4*t+b),4),R('v',P(par,blk)+4*t,4),'0' if (first and t==0) else d))
    return out
def k_reads(u):
    return [dsr('ds_read_b128',R('a',KF+4*s,4),v(KA[s]),KRING+kslot(u)*8192) for s in range(8)]
def v_reads(u):
    out=[]
    for t in range(2):
        for b in range(4):
            for uu in range(2):
                out.append(dsr('ds_read_b64_tr_b16',R('a',VF+4*(4*t+b)+2*uu,2),v(VA[b]),vslot(u)*8192+(16*t+8*uu)*256))
    return out
def k_dma(Tp):
    inc = dK4 if Tp==4 else dK5 if Tp==5 else '0x4000'
    pre=[salu(f's_add_u32 {sK}, {sK}, {inc}',[sK],[sK]), salu(f's_add_u32 m0, {sW4}, {KRING+((2*Tp)%8)*8192}',[sW4],['m0'])]
    return pre,[dma(v(KD[i]),SRDK,sK,1024*i,f'K{Tp}',OPT['ntkv']) for i in range(4)]
def v_dma(Tp):
    inc = hex(0x4000+JUMP) if Tp==5 else '0x4000'
    pre=[salu(f's_add_u32 {sV}, {sV}, {inc}',[sV],[sV]), salu(f's_add_u32 m0, {sW4}, {VRING+((2*Tp+6)%8)*8192}',[sW4],['m0'])]
    return pre,[dma(v(VD),SRDV,sV,1024*i,f'V{Tp}',OPT['ntkv']) for i in range(4)]
def q_dma(blk,g,ldsbase=None):
    pre=[salu(f's_add_u32 {sTMP}, {sQ}, {blk*8192+g*4096}',[sQ],[sTMP]),
         salu(f's_add_u32 m0, {sQS}, {g*4096}',[sQS],['m0']) if ldsbase is None else salu(f's_add_u32 m0, {ldsbase}, {g*4096}',[ldsbase],['m0'])]
    return pre,[dma(v(KD[i]),SRDQ,sTMP,1024*i,f'Q{blk}',OPT['ntq']) for i in range(4)]
def q_reads(blk,base=sQS):
    out=[]
    for s in range(8):
        t=S(1,0)+s
        out.append([valu('v_add_u32',v(t),base,v(KA[s])), dsr('ds_read_b128',R('a',QN+32*blk+4*s,4),v(t),0)])
    return out
def q_moves(): return [valu('v_accvgpr_mov_b32',f'a{QC+i}',f'a{QN+i}') for i in range(64)]
def pair_ops(par,k):
    blk,i=k//8,k%8; a,b=T[2*(k%4)],T[2*(k%4)+1]; s=S(par,blk)+2*i
    f=[valu('v_fma_f32',v(a),v(s),sC,f'-v{MC[blk]}'),valu('v_fma_f32',v(b),v(s+1),sC,f'-v{MC[blk]}')]
    e=[valu('v_exp_f32',v(a),v(a),c=2.0,trans=True),valu('v_exp_f32',v(b),v(b),c=2.0,trans=True)]
    if i==0: ad=[valu('v_add_f32',v(TS[blk]),v(a),v(b))]
    else: ad=[valu('v_add_f32',v(TS[blk]),v(TS[blk]),v(a)),valu('v_add_f32',v(TS[blk]),v(TS[blk]),v(b))]
    cv=valu('v_cvt_pk_bf16_f32',v(P(par,blk)+i),v(a),v(b),c=1.15)
    return f,e,ad,cv
def rowmax(par,blk,t,t2):
    s=S(par,blk); out=[valu('v_max3_f32',v(t),v(s),v(s+1),v(s+2))]
    for i in range(3,15,2): out.append(valu('v_max3_f32',v(t),v(t),v(s+i),v(s+i+1)))
    out.append(valu('v_max_f32',v(t),v(t),v(s+15)))
    out.append(valu('v_mov_b32',v(t2),v(t)))
    return out
def swapmax(t,t2): return [I(f'v_permlane32_swap_b32 {v(t)}, {v(t2)}','valu',[v(t),v(t2)],[v(t),v(t2)]), valu('v_max_f32',v(t),v(t),v(t2))]
def softmax_stream(j):
    par=j%2; out=[]
    if j==0:
        a=rowmax(par,0,T[0],T[2]); b=rowmax(par,1,T[1],T[3])
        out+=a[:2]
        for x in range(2,len(a)): out+=[a[x],b[x-2]]
        out+=b[-2:]
        sa=swapmax(T[0],T[2]); sb=swapmax(T[1],T[3])
        out+=[sa[0],nop(0),sb[0],sa[1],sb[1],valu('v_mul_f32',v(MC[0]),sC,v(T[0])),valu('v_mul_f32',v(MC[1]),sC,v(T[1]))]
    ops=[pair_ops(par,k) for k in range(16)]
    for k in range(18):
        if k<16: out+=ops[k][0]
        if 1<=k<=16: out+=ops[k-1][1]
        if 2<=k<=17:
            out+=ops[k-2][2]
            if k-2<14: out.append(ops[k-2][3])
    tail=[ops[14][3],ops[15][3]]
    return out,tail
def check_ops(j,tail):
    if j==0:
        return [tail[0],tail[1],valu('v_mov_b32',v(L[0]),v(TS[0])),valu('v_mov_b32',v(L[1]),v(TS[1]))]
    return [tail[0],valu('v_max_f32',v(VX),v(TS[0]),v(TS[1])),tail[1],
            valu('v_cmp_lt_f32','vcc',sT,v(VX)),I(f's_cbranch_vccnz RARE_{j}','salu',['vcc'],[]),label(f'RET_{j}'),
            valu('v_add_f32',v(L[0]),v(L[0]),v(TS[0])),valu('v_add_f32',v(L[1]),v(L[1]),v(TS[1]))]
def rl_ops():
    a,b=S(1,0),S(1,0)+1
    return [valu('v_mov_b32',v(a),v(L[0])),valu('v_mov_b32',v(b),v(L[1])),nop(1),
            I(f'v_permlane32_swap_b32 {v(L[0])}, {v(a)}','valu',[v(L[0]),v(a)],[v(L[0]),v(a)]),
            I(f'v_permlane32_swap_b32 {v(L[1])}, {v(b)}','valu',[v(L[1]),v(b)],[v(L[1]),v(b)]),
            valu('v_add_f32',v(L[0]),v(L[0]),v(a)),valu('v_add_f32',v(L[1]),v(L[1]),v(b)),
            valu('v_rcp_f32',v(L[0]),v(L[0]),c=2.0,trans=True),valu('v_rcp_f32',v(L[1]),v(L[1]),c=2.0,trans=True)]
NST=15
def stamp(real=False):
    if OPT.get('dbg')!='1': return []
    o=[wait('s_waitcnt lgkmcnt(0)'),salu('s_memrealtime s[52:53]' if real else 's_memtime s[52:53]'),wait('s_waitcnt lgkmcnt(0)')]
    for i in range(NST-1,0,-1): o.append(salu(f's_mov_b32 s{64+i}, s{64+i-1}'))
    o.append(salu('s_mov_b32 s64, s52'))
    return o
def dump():
    if OPT.get('dbg')!='1': return []
    o=[salu(f's_cmp_eq_u32 s2, {OPT.get("wg","0")}'),I('s_cbranch_scc0 DONE','salu'),salu('s_cmp_eq_u32 s34, 0'),I('s_cbranch_scc0 DONE','salu'),
       salu('s_load_dwordx2 s[56:57], s[0:1], 32'),wait('s_waitcnt lgkmcnt(0)'),salu('s_mov_b32 s58, 256'),salu('s_mov_b32 s59, 0x20000'),salu('s_and_b32 s57, s57, 0xffff'),
       valu('v_mov_b32','v1','0')]
    for i in range(NST):
        o+=[valu('v_mov_b32','v2',f's{64+i}'),I(f'buffer_store_dword v2, v1, s[56:59], 0 offen offset:{4*(NST-1-i)}','store'),nop(1)]
    o.append(wait('s_waitcnt vmcnt(0)'))
    return o
def cost(x): return sum(i.c for i in x)
def weave(mf,misc,stream,first_gap=0):
    n=len(mf); out=[]
    tot=cost(stream)+sum(cost(m) for m in misc[first_gap:]); ng=n-first_gap
    done=0.0; si=0
    for g in range(n):
        if mf[g] is not None: out.append(mf[g])
        out+=misc[g]
        if g<first_gap: continue
        done+=cost(misc[g]); target=tot*(g-first_gap+1)/ng
        while si<len(stream) and (done+stream[si].c*0.5<=target or g==n-1):
            out.append(stream[si]); done+=stream[si].c; si+=1
    return out
def spread(misc,ops,g0,g1):
    n=len(ops)
    for x,o in enumerate(ops):
        g=g0+(x*(g1-g0+1))//n
        misc[g]+= o if isinstance(o,list) else [o]
def step_pair(j,mfY,miscY,mfX,miscX,endY,endX):
    st,tail=softmax_stream(j)
    mf=mfY+mfX; misc=miscY+miscX
    misc[15]=misc[15]
    seq=weave(mf,misc,st,first_gap=1)
    if mfX[0] is not None:
        ix=seq.index(mfX[0])
    else: ix=len(seq)
    y,x=seq[:ix],seq[ix:]
    return y+endY, x+check_ops(j,tail)+endX
def miscY_for(j,moves):
    m=[[] for _ in range(16)]
    spread(m,k_reads((j+2)%16),1,8)
    nQafter=0
    if j%2==1: pre,d=k_dma(((j+1)//2)%8)
    else: pre,d=v_dma(j//2)
    m[0]+=pre; spread(m,d,2,11)
    if j in(0,1):
        pre,d=q_dma(0,j); m[11]+=pre; spread(m,d,12,15)
    if j==8:
        pre,d=q_dma(1,0); m[11]+=pre; spread(m,d,12,15)
    if j in(7,13):
        spread(m,q_reads(0 if j==7 else 1),9,14); nQafter=8
    if j==15:
        spread(m,[[o] for o in rl_ops()],1,12)
    spread(m,moves,0,15) if moves else None
    return m,[wait(f's_waitcnt lgkmcnt({nQafter})')]
def miscX_for(j,moves):
    m=[[] for _ in range(16)]
    vr=v_reads(j)
    spread(m,vr[:8],0,3); spread(m,vr[8:],4,11)
    if j==9:
        pre,d=q_dma(1,1); m[11]+=pre; spread(m,d,12,15)
    spread(m,moves,0,15) if moves else None
    if j%2==1: end=[wait('s_waitcnt vmcnt(NN) lgkmcnt(0)',f'B{((j+1)//2)%8}'),I('s_barrier','bar')]
    else: end=[wait('s_waitcnt lgkmcnt(0)')]
    return m,end
def epilogue():
    t0=S(1,0)
    WA=[t0+i for i in range(8)]; RA=t0+8; SV=[t0+9,t0+10]; LN=t0+11; X=t0+12
    e=[]
    e+=[valu('v_mbcnt_lo_u32_b32',v(LN),'-1','0'),valu('v_mbcnt_hi_u32_b32',v(LN),'-1',v(LN)),
        valu('v_and_b32',v(X),'31',v(LN)),
        valu('v_lshlrev_b32',v(WA[0]),'7',v(X)),
        valu('v_and_b32',v(X),'7',v(X)),valu('v_lshl_add_u32',v(WA[0]),v(X),'4',v(WA[0])),
        valu('v_lshrrev_b32',v(X),'5',v(LN)),valu('v_lshl_add_u32',v(WA[0]),v(X),'3',v(WA[0])),
        valu('v_add_u32',v(WA[0]),sQS,v(WA[0]))]
    for p in range(1,8): e.append(valu('v_xor_b32',v(WA[p]),str(16*p) if 16*p<=64 else hex(16*p),v(WA[0])))
    e+=[valu('v_lshrrev_b32',v(X),'3',v(LN)),
        valu('v_and_b32',v(LN),'7',v(LN)),
        valu('v_lshlrev_b32',v(SV[0]),'8',v(X)),valu('v_lshl_add_u32',v(SV[0]),v(LN),'4',v(SV[0])),
        valu('v_add_u32',v(SV[1]),'0x1000',v(SV[0])),
        valu('v_xor_b32',v(LN),v(X),v(LN)),valu('v_lshlrev_b32',v(RA),'7',v(X)),
        valu('v_lshl_add_u32',v(RA),v(LN),'4',v(RA)),valu('v_add_u32',v(RA),sQS,v(RA)),
        salu(f's_add_u32 {sOB}, {sO}, 0x2000',[sO],[sOB])]
    def conv(p):
        blk,dh=p//2,p%2; o=[]
        sel='op_sel_hi:[1,0]' if blk==0 else 'op_sel:[0,1] op_sel_hi:[1,1]'
        for bb in range(2):
            base=O(blk,2*dh+bb)
            for g in range(4):
                r=base+4*g
                o+=[valu('v_pk_mul_f32',R('v',r,2),R('v',r,2),R('v',L[0],2),extra=sel),
                    valu('v_pk_mul_f32',R('v',r+2,2),R('v',r+2,2),R('v',L[0],2),extra=sel)]
            for g in range(4):
                r=base+4*g
                o+=[valu('v_cvt_pk_bf16_f32',v(r),v(r),v(r+1)),valu('v_cvt_pk_bf16_f32',v(r+1),v(r+2),v(r+3))]
            for g in range(4):
                o.append(dsw('ds_write_b64',v(WA[4*bb+g]),R('v',base+4*g,2),(p%2)*4096))
        for i in range(4): o.append(dsr('ds_read_b128',R('v',O(blk,2*dh)+4*i,4),v(RA),(p%2)*4096+1024*i))
        return o
    def sto(p):
        blk,dh=p//2,p%2
        return [store(R('v',O(blk,2*dh)+4*i,4),v(SV[i//2]),SRDO,sO if blk==0 else sOB,dh*128+(i%2)*2048,OPT['nto']) for i in range(4)]
    e+=conv(0)+conv(1)+[wait('s_waitcnt lgkmcnt(12)')]+sto(0)+conv(2)+[wait('s_waitcnt lgkmcnt(12)')]+sto(1)+conv(3)+[wait('s_waitcnt lgkmcnt(12)')]+sto(2)+[wait('s_waitcnt lgkmcnt(0)')]+sto(3)
    e+=[nop(1)]
    return e
def rare(j):
    par=j%2; e=[label(f'RARE_{j}'),nop(7),nop(7)]
    for blk in range(2):
        t,t2,al=T[0],T[1],T[2]
        e+=rowmax(par,blk,t,t2)+[nop(1)]+swapmax(t,t2)
        e+=[valu('v_mul_f32',v(t),sC,v(t)),valu('v_max_f32',v(t),v(t),v(MC[blk])),valu('v_sub_f32',v(al),v(MC[blk]),v(t)),
            valu('v_exp_f32',v(al),v(al),trans=True),valu('v_mov_b32',v(MC[blk]),v(t)),nop(0),valu('v_mul_f32',v(L[blk]),v(L[blk]),v(al))]
        for r in range(64*blk,64*blk+64): e.append(valu('v_mul_f32',v(r),v(r),v(al)))
        for i in range(8):
            f,ex,ad,cv=pair_ops(par,blk*8+i)
            e+=f+ex+[nop(0)]+ad+[cv]
    e+=[nop(1),I(f's_branch RET_{j}','salu')]
    return e
def build_loop():
    mv=q_moves(); seq=[]
    phases={}
    for j in range(16):
        jm=(j-1)%16
        mvY=[[x] for x in mv[8*(2*jm+1):8*(2*jm+1)+8]] if 0<=jm<=3 else []
        mvX=[[x] for x in mv[8*(2*j):8*(2*j)+8]] if 0<=j<=3 else []
        mY,eY=miscY_for(jm,mvY); mX,eX=miscX_for(j,mvX)
        y,x=step_pair(j,pv_mfmas(jm,jm==0),mY,qk_mfmas((j+1)%16,useQN=(j==15 or j<=3)),mX,eY,eX)
        phases[('Y',jm)]=y; phases[('X',j)]=x
    return phases
def fix_vmcnt(cyc):
    vm=[(x,i) for x,i in enumerate(cyc) if i.k in('dma','store')]
    n=len(cyc)
    for x,i in enumerate(cyc):
        if i.k=='wait' and i.tag and i.tag[0]=='B':
            Tb=int(i.tag[1:]); need={f'K{(Tb-3)%8}',f'V{(Tb-3)%8}'}
            if Tb==4: need.add('Q0')
            if Tb==7: need.add('Q1')
            cnt=0; found=set(); y=x
            best=None
            for step in range(1,n):
                q=cyc[(x-step)%n]
                if q.k in('dma','store'):
                    if q.tag in need and best is None: best=cnt
                    cnt+=1
                    if best is not None: break
            i.t=i.t.replace('NN',str(best));
            assert best<=63
def prologue():
    e=[]
    s=lambda t: e.append(salu(t))
    s('s_cmp_ge_u32 s2, 256'); e.append(I('s_cbranch_scc1 DONE','salu'))
    e+=stamp(True)+stamp()
    s('s_load_dwordx4 s[36:39], s[0:1], 0'); s('s_load_dwordx4 s[40:43], s[0:1], 16')
    e.append(valu('v_lshrrev_b32','v1','6','v0')); e.append(nop(0))
    e.append(I('v_readfirstlane_b32 s34, v1','valu',['v1'],['s34']))
    e.append(valu('v_and_b32','v0','63','v0'))
    ln='v0'; a,b,c_,d='v1','v2','v3','v4'
    e+=[valu('v_and_b32',a,'31',ln),valu('v_lshrrev_b32',b,'5',ln),valu('v_and_b32',c_,'15',ln)]
    for s_ in range(8):
        e+=[valu('v_or_b32',d,str(2*s_),b),valu('v_xor_b32',d,d,c_),valu('v_lshlrev_b32',d,'4',d),valu('v_lshl_add_u32',v(KA[s_]),a,'8',d)]
    e+=[valu('v_lshrrev_b32',a,'2',c_),valu('v_lshl_add_u32',b,b,'2',a),valu('v_lshlrev_b32',b,'8',b),
        valu('v_bfe_u32',d,ln,'4','1'),valu('v_lshl_add_u32',b,d,'5',b),valu('v_and_b32',d,'3',ln),valu('v_lshl_add_u32',b,d,'3',b),
        valu('v_add_u32',b,hex(VRING),b)]
    for bk in range(4):
        e+=[valu('v_xor_b32',d,str(bk),a),valu('v_lshl_add_u32',v(VA[bk]),d,'6',b)]
    e+=[valu('v_lshrrev_b32',a,'4',ln),valu('v_lshlrev_b32',b,'8',a)]
    for i in range(4):
        e+=[valu('v_or_b32',d,str(4*i),a),valu('v_xor_b32',d,d,c_),valu('v_lshl_add_u32',v(KD[i]),d,'4',b)]
    e+=[valu('v_lshrrev_b32',d,'2',c_),valu('v_xor_b32',d,d,a),valu('v_lshl_add_u32',d,d,'6',b),valu('v_and_b32',a,'3',ln),valu('v_lshl_add_u32',v(VD),a,'4',d)]
    s('s_and_b32 s35, s2, 7'); s('s_lshr_b32 s44, s2, 3'); s('s_and_b32 s45, s44, 1'); s('s_lshr_b32 s44, s44, 1')
    s('s_lshl_b32 s35, s35, 4'); s('s_add_u32 s35, s35, s44')
    s('s_lshl_b32 s35, s35, 17')
    s(f's_lshl_b32 {sW4}, s34, 12')
    s(f's_lshl_b32 {sQS}, s34, 13'); s(f's_add_u32 {sQS}, {sQS}, {STG}')
    s('s_lshl_b32 s45, s45, 16'); s('s_lshl_b32 s44, s34, 14'); s('s_add_u32 s45, s45, s44'); s(f's_add_u32 {sQ}, s35, s45')
    s(f's_mov_b32 {sO}, 0x7f000000')
    s(f's_mov_b32 {sC}, 0x3e0293ee'); s(f's_mov_b32 {sT}, {OPT["thr"]}'); s(f's_mov_b32 {sIT}, -1')
    s(f's_mov_b32 s49, {hex(0x4000+JUMP)}'); s('s_movk_i32 s50, 0x4000'); s('s_cmp_ge_u32 s34, 2'); s(f's_cselect_b32 {dK4}, s49, s50'); s(f's_cselect_b32 {dK5}, s50, s49')
    e.append(valu('v_mov_b32',v(VX),'0'))
    e.append(wait('s_waitcnt lgkmcnt(0)'))
    for srd,src in((4,36),(8,38),(12,40),(16,42)):
        s(f's_mov_b32 s{srd}, s{src}'); s(f's_and_b32 s{srd+1}, s{src+1}, 0xffff'); s(f's_mov_b32 s{srd+2}, 0x4000000'); s(f's_mov_b32 s{srd+3}, 0x20000')
    s(f's_lshl_b32 s46, s34, 13'); s(f's_add_u32 s46, s46, {VRING+4*8192}')
    for g in range(2):
        pre,d_=q_dma(0,g); e+=pre+[nop(0)]+d_
    for g in range(2):
        pre,d_=q_dma(1,g,'s46'); e+=pre+[nop(0)]+d_
    s('s_and_b32 s47, s34, 1'); s('s_lshl_b32 s47, s47, 7')
    e+=[nop(0),valu('v_xor_b32','v5','s47',v(KD[0])),valu('v_xor_b32','v6','s47',v(KD[1]))]
    s('s_lshl_b32 s47, s34, 11'); s(f's_add_u32 {sTMP}, s35, s47'); e.append(salu(f's_add_u32 m0, s47, {KRING+kslot(0)*8192}',[],['m0'])); e.append(nop(0))
    e+=[dma('v5',SRDK,sTMP,0,'K0p',OPT['ntkv']),dma('v6',SRDK,sTMP,1024,'K0p',OPT['ntkv'])]
    s('s_lshr_b32 s47, s34, 1'); s('s_add_u32 s47, s47, 1'); s('s_lshl_b32 s47, s47, 13'); s('s_and_b32 s48, s34, 1'); s('s_lshl_b32 s48, s48, 12')
    s(f's_add_u32 {sK}, s35, s47'); s(f's_add_u32 {sK}, {sK}, s48'); s(f's_add_u32 {sV}, s35, {sW4}')
    for Tp in(5,6):
        for fn,reg in((k_dma,sK),(v_dma,sV)):
            pre,d_=fn(Tp)
            e+= (pre[1:] if Tp==5 else pre)+[nop(0)]+d_
    e.append(wait('s_waitcnt vmcnt(16)'))
    e+=stamp()
    for blk,base in((0,sQS),(1,'s46')):
        for x in q_reads(blk,base): e+=x
        e.append(wait('s_waitcnt lgkmcnt(0)'))
    e.append(I('s_barrier','bar'))
    e+=k_reads(0)
    for fn in(k_dma,v_dma):
        pre,d_=fn(7); e+=pre+[nop(0)]+d_
    e.append(wait('s_waitcnt lgkmcnt(0)'))
    e+=qk_mfmas(0,True)
    e+=[wait('s_waitcnt vmcnt(16)'),I('s_barrier','bar')]
    mY,eY=miscY_for(15,[])
    mY[1:13]=[[i for i in g if i.k in('dsr','dma','salu')] for g in mY[1:13]]
    st,tail=softmax_stream(0)
    return e,mY,eY
def main():
    ph=build_loop()
    epi=epilogue()
    top=[label('LOOP')]+stamp()+[salu(f's_cmp_lt_i32 {sIT}, 0'),I('s_cbranch_scc1 SKIP','salu')]
    mid=[label('AFTER')]+stamp()+[salu(f's_add_u32 {sIT}, {sIT}, 1'),salu(f's_cmp_eq_u32 {sIT}, 4'),I('s_cbranch_scc1 FIN','salu'),
         salu(f's_add_u32 {sQ}, {sQ}, 0x1000000',[sQ],[sQ])]
    mid.insert(len(mid)-1,salu(f's_mov_b32 {sO}, {sQ}',[sQ],[sO]))
    body=[]
    for j in range(16):
        body+=ph[('X',j)]+ph[('Y',j)]
    cyc=top+epi+mid+body
    fix_vmcnt(cyc)
    pro,mY,eY=prologue()
    y15=[i for i in ph[('Y',15)] if i.k!='mfma']
    rl_t={o.t for o in rl_ops()}
    drop=lambda i: (i.w&{v(L[0]),v(L[1]),v(S(1,0)),v(S(1,0)+1)}) and i.k in('valu','trans')
    y15p=[nop(7),nop(7)]+[I(i.t,i.k,i.r,i.w,i.c,i.tag) for i in y15 if not drop(i)]
    skip=[label('SKIP')]+[store('v[0:3]',v(VX),SRDO,sO,0) for _ in range(16)]+[I('s_branch AFTER','salu')]
    allc=pro+y15p+[I('s_branch LOOP','salu')]
    errs=check_hazards(pro+y15p,'pro')+check_hazards(cyc+cyc[:60],'loop')
    rr=[]
    for j in range(1,16):
        r=rare(j); errs+=check_hazards(r,f'rare{j}'); rr+=r
    for x in errs: print('HAZARD',x,file=sys.stderr)
    txt=[]
    hdr=open('standalone__gqa_softmax__near_ridge.s.ref').read().split('\n')
    for l in hdr[:11]:
        if l.startswith('; @launch'): l='; @launch grid=(256,1,1) block=(256,1,1) lds=163840'
        if l.startswith(';'): txt.append(l)
    N='standalone__gqa_softmax__near_ridge_kernel'
    txt+=['.amdgcn_target "amdgcn-amd-amdhsa--gfx950"','.text',f'.globl {N}','.p2align 8',f'.type {N},@function',f'{N}:']
    def emit(seq):
        for i in seq: txt.append(i.t if i.k=='label' else '  '+i.t)
    emit(allc);
    txt.append('.p2align 6'); emit(cyc); txt.append('  s_branch LOOP')
    emit([I(f'v_mov_b32 {v(VX)}, 0','valu')] and []); emit(skip); emit(rr)
    txt.append('FIN:'); emit([wait('s_waitcnt vmcnt(0)')]+stamp()+stamp(True)+dump() if OPT.get('dbg')=='1' else [])
    txt+=['DONE:','  s_endpgm','.section .rodata,"a"','.p2align 6',f'.amdhsa_kernel {N}','  .amdhsa_next_free_vgpr 448','  .amdhsa_next_free_sgpr 96',
          '  .amdhsa_accum_offset 256','  .amdhsa_group_segment_fixed_size 0','  .amdhsa_kernarg_size 48','  .amdhsa_user_sgpr_count 2',
          '  .amdhsa_user_sgpr_kernarg_segment_ptr 1','  .amdhsa_system_sgpr_workgroup_id_x 1','.end_amdhsa_kernel','']
    open(sys.argv[1],'w').write('\n'.join(txt))
    nm=sum(1 for i in cyc if i.k=='mfma'); print('loop instrs',len(cyc),'mfma',nm,'cost units',sum(i.c for i in cyc), [i.t for i in cyc if i.k=='wait' and i.tag],file=sys.stderr)
main()
```

```python
import re
class I:
    __slots__=('t','k','r','w','c','tag')
    def __init__(s,t,k,r=(),w=(),c=1.0,tag=None):
        s.t=t; s.k=k; s.r=set(r); s.w=set(w); s.c=c; s.tag=tag
def rng(p,a,n): return [f'{p}{i}' for i in range(a,a+n)]
def R(p,a,n): return f'{p}[{a}:{a+n-1}]' if n>1 else f'{p}{a}'
def parse(x):
    m=re.fullmatch(r'-?([vas])\[(\d+):(\d+)\]',x)
    if m: return rng(m.group(1),int(m.group(2)),int(m.group(3))-int(m.group(2))+1)
    m=re.fullmatch(r'-?([vas])(\d+)',x)
    if m: return [m.group(1)+m.group(2)]
    if x in('vcc','m0'): return [x]
    return []
def valu(op,dst,*src,c=1.0,trans=False,extra='',rmw=False):
    r=[]
    for s in src: r+=parse(s)
    w=parse(dst)
    if rmw: r+=w
    return I(f'{op} {dst}, '+', '.join(src)+(' '+extra if extra else ''),'trans' if trans else 'valu',r,w,c)
def mfma(d,a,b,c):
    return I(f'v_mfma_f32_32x32x16_bf16 {d}, {a}, {b}, {c}','mfma',parse(a)+parse(b)+parse(c),parse(d),2.0)
def salu(t,r=(),w=()): return I(t,'salu',r,w,1.0)
def dsr(op,dst,addr,off): return I(f'{op} {dst}, {addr} offset:{off}','dsr',parse(addr),parse(dst),1.0)
def dsw(op,addr,src,off): return I(f'{op} {addr}, {src} offset:{off}','dsw',parse(addr)+parse(src),(),1.5)
def dma(voff,srd,soff,off,tag,nt=''):
    return I(f'buffer_load_dwordx4 {voff}, {srd}, {soff} offen offset:{off}{nt} lds','dma',parse(voff)+parse(srd)+parse(soff)+['m0'],(),2.0,tag)
def store(src,voff,srd,soff,off,nt=''):
    return I(f'buffer_store_dwordx4 {src}, {voff}, {srd}, {soff} offen offset:{off}{nt}','store',parse(src)+parse(voff)+parse(srd)+parse(soff),(),2.0,'st')
def wait(t,tag=None): return I(t,'wait',(),(),1.0,tag)
def nop(n): return I(f's_nop {n}','nop',(),(),1.0,n)
def label(n): return I(n+':','label',(),(),0.0)
def states(i):
    if i.k=='label': return 0
    if i.k=='nop': return i.tag+1
    return 1
FIX=[]
def fix_hazards(seq,wrap=60):
    for it in range(50):
        FIX.clear(); check_hazards(seq+seq[:wrap])
        if not FIX: return
        y,k=FIX[0]; y%=len(seq)
        seq.insert(y,nop(k-1))
def check_hazards(seq,name=''):
    errs=[]
    n=len(seq)
    for x,p in enumerate(seq):
        if p.k in('label','wait','nop','dsr','dsw','dma'):
            continue
        d=0
        for y in range(x+1,min(n,x+40)):
            q=seq[y]
            need=0
            isv=q.k in('valu','trans')
            if p.k in('valu','trans'):
                if q.k=='mfma' and (p.w&q.r): need=2
                if p.k=='trans' and q.k=='valu' and (p.w&q.r): need=max(need,1)
                if 'permlane' in q.t and (p.w&(q.r|q.w)): need=max(need,2)
                if 'readfirstlane' in q.t and (p.w&q.r): need=max(need,1)
                sw={z for z in p.w if z[0]=='s' or z=='vcc'}
                if sw and isv and (sw&q.r): need=max(need,2)
                if sw and q.k in('dma','store') and (sw&q.r): need=max(need,5)
            if p.k=='mfma':
                if q.k=='mfma':
                    pc=parse(p.t.split(', ')[-1]); qc=parse(q.t.split(', ')[-1])
                    qab=set(parse(q.t.split(', ')[1])+parse(q.t.split(', ')[2]))
                    if p.w&qab: need=12
                    if (p.w&set(qc)) and set(qc)!=p.w: need=max(need,10)
                    if (p.w&q.w) and not(set(qc)==p.w): need=max(need,10)
                else:
                    if p.w&(q.r|q.w): need=12
                    pc=set(parse(p.t.split(', ')[-1]))
                    if isv and (pc&q.w): need=max(need,7)
            if p.k=='store' and (isv or q.k in('mfma','dsr')) and (p.r&q.w): need=max(need,2)
            if p.k=='salu' and 'm0' in p.w and q.k=='dma': need=max(need,1)
            if need>d: FIX.append((y,need-d)); errs.append(f'{name}: [{x}] {p.t}  ->  [{y}] {q.t}  dist {d} need {need}')
            d+=states(q)
            if d>=13: break
    return errs
```

```python
import sys
from lib import *
OPT=dict(ntq=' nt',ntkv=' nt',nto=' nt',thr='0x44800000')
for a in sys.argv[2:]:
    k,v=a.split('='); OPT[k]=v.replace('_',' ')
def O(blk,b): return 64*blk+16*b
def S(par,blk): return 128+32*par+16*blk
def P(par,blk): return 192+16*par+8*blk
T=[224+i for i in range(8)]
MC=[232,233]; L=[234,235]; TS=[236,237]
KA=[238+i for i in range(8)]; VA=[246+i for i in range(4)]; KD=[250+i for i in range(4)]; VD=254; VX=255
QC=0; QN=64; KF=128; VF=160
SRDQ,SRDK,SRDV,SRDO='s[4:7]','s[8:11]','s[12:15]','s[16:19]'
sW4,sK,sV,sQ,sO,dK4,dK5,sIT,sC,sT,sQS,sTMP,sOB,sTMP2='s20','s21','s22','s23','s24','s25','s26','s27','s28','s29','s30','s31','s32','s33'
sKo,sKb,sVo,sVb='s60','s61','s62','s63'
KRING=0; VRING=65536; STG=131072
JUMP=127*131072
def v(n): return f'v{n}'
def kslot(u): return (u+1)%8
def vslot(u): return u%8
def qk_mfmas(j1,useQN):
    par=j1%2; qb=QN if useQN else QC; out=[]
    for s in range(8):
        for blk in range(2):
            d=R('v',S(par,blk),16)
            out.append(mfma(d,R('a',KF+4*s,4),R('a',qb+32*blk+4*s,4),'0' if s==0 else d))
    return out
def pv_mfmas(j,first):
    par=j%2; out=[]
    for t in range(2):
        for b in range(4):
            for blk in range(2):
                d=R('v',O(blk,b),16)
                out.append(mfma(d,R('a',VF+4*(4*t+b),4),R('v',P(par,blk)+4*t,4),'0' if (first and t==0) else d))
    return out
def k_reads(u):
    return [dsr('ds_read_b128',R('a',KF+4*s,4),v(KA[s]),KRING+kslot(u)*8192) for s in range(8)]
def v_reads(u):
    out=[]
    for t in range(2):
        for b in range(4):
            for uu in range(2):
                out.append(dsr('ds_read_b64_tr_b16',R('a',VF+4*(4*t+b)+2*uu,2),v(VA[b]),vslot(u)*8192+(16*t+8*uu)*256))
    return out
def k_dma(Tp):
    if OPT.get('rot','0')!='1':
        inc = dK4 if Tp==4 else dK5 if Tp==5 else '0x4000'
        pre=[salu(f's_add_u32 {sK}, {sK}, {inc}',[sK],[sK]), salu(f's_add_u32 m0, {sW4}, {KRING+((2*Tp)%8)*8192}',[sW4],['m0'])]
        return pre,[dma(v(KD[i]),SRDK,sK,1024*i,f'K{Tp}',OPT['ntkv']) for i in range(4)]
    pre=[salu(f's_add_u32 {sKo}, {sKo}, 0x4000'),salu(f's_and_b32 {sKo}, {sKo}, 0x1ffff')]
    if Tp in(4,5): pre.append(salu(f's_add_u32 {sKb}, {sKb}, {dK4 if Tp==4 else dK5}'))
    pre+=[salu(f's_add_u32 {sK}, {sKb}, {sKo}',[],[sK]), salu(f's_add_u32 m0, {sW4}, {KRING+((2*Tp)%8)*8192}',[sW4],['m0'])]
    return pre,[dma(v(KD[i]),SRDK,sK,1024*i,f'K{Tp}',OPT['ntkv']) for i in range(4)]
def v_dma(Tp):
    if OPT.get('rot','0')!='1':
        inc = hex(0x4000+JUMP) if Tp==5 else '0x4000'
        pre=[salu(f's_add_u32 {sV}, {sV}, {inc}',[sV],[sV]), salu(f's_add_u32 m0, {sW4}, {VRING+((2*Tp+6)%8)*8192}',[sW4],['m0'])]
        return pre,[dma(v(VD),SRDV,sV,1024*i,f'V{Tp}',OPT['ntkv']) for i in range(4)]
    pre=[salu(f's_add_u32 {sVo}, {sVo}, 0x4000'),salu(f's_and_b32 {sVo}, {sVo}, 0x1ffff')]
    if Tp==5: pre.append(salu(f's_add_u32 {sVb}, {sVb}, 0x1000000'))
    pre+=[salu(f's_add_u32 {sV}, {sVb}, {sVo}',[],[sV]), salu(f's_add_u32 m0, {sW4}, {VRING+((2*Tp+6)%8)*8192}',[sW4],['m0'])]
    return pre,[dma(v(VD),SRDV,sV,1024*i,f'V{Tp}',OPT['ntkv']) for i in range(4)]
def q_dma(blk,g,ldsbase=None):
    pre=[salu(f's_add_u32 {sTMP}, {sQ}, {blk*8192+g*4096}',[sQ],[sTMP]),
         salu(f's_add_u32 m0, {sQS}, {g*4096}',[sQS],['m0']) if ldsbase is None else salu(f's_add_u32 m0, {ldsbase}, {g*4096}',[ldsbase],['m0'])]
    return pre,[dma(v(KD[i]),SRDQ,sTMP,1024*i,f'Q{blk}',OPT['ntq']) for i in range(4)]
def q_reads(blk,base=sQS):
    out=[]
    for s in range(8):
        t=S(1,0)+s
        out.append([I(f'v_add_u32 {v(t)}, {base}, {v(KA[s])}','salu',[v(KA[s])],[v(t)]), dsr('ds_read_b128',R('a',QN+32*blk+4*s,4),v(t),0)])
    return out
def q_moves(): return [valu('v_accvgpr_mov_b32',f'a{QC+i}',f'a{QN+i}') for i in range(64)]
def pair_ops(par,k):
    blk,i=k//8,k%8; a,b=T[2*(k%4)],T[2*(k%4)+1]; s=S(par,blk)+2*i
    f=[valu('v_fma_f32',v(a),v(s),sC,f'-v{MC[blk]}'),valu('v_fma_f32',v(b),v(s+1),sC,f'-v{MC[blk]}')]
    e=[valu('v_exp_f32',v(a),v(a),c=2.0,trans=True),valu('v_exp_f32',v(b),v(b),c=2.0,trans=True)]
    if i==0: ad=[valu('v_add_f32',v(TS[blk]),v(a),v(b))]
    else: ad=[valu('v_add_f32',v(TS[blk]),v(TS[blk]),v(a)),valu('v_add_f32',v(TS[blk]),v(TS[blk]),v(b))]
    cv=valu('v_cvt_pk_bf16_f32',v(P(par,blk)+i),v(a),v(b),c=1.15)
    return f,e,ad,cv
def rowmax(par,blk,t,t2):
    s=S(par,blk); out=[valu('v_max3_f32',v(t),v(s),v(s+1),v(s+2))]
    for i in range(3,15,2): out.append(valu('v_max3_f32',v(t),v(t),v(s+i),v(s+i+1)))
    out.append(valu('v_max_f32',v(t),v(t),v(s+15)))
    out.append(valu('v_mov_b32',v(t2),v(t)))
    return out
def swapmax(t,t2): return [I(f'v_permlane32_swap_b32 {v(t)}, {v(t2)}','valu',[v(t),v(t2)],[v(t),v(t2)]), valu('v_max_f32',v(t),v(t),v(t2))]
def softmax_stream(j):
    par=j%2; out=[]
    if j==0:
        a=rowmax(par,0,T[0],T[2]); b=rowmax(par,1,T[1],T[3])
        out+=a[:2]
        for x in range(2,len(a)): out+=[a[x],b[x-2]]
        out+=b[-2:]
        sa=swapmax(T[0],T[2]); sb=swapmax(T[1],T[3])
        out+=[sa[0],nop(0),sb[0],sa[1],sb[1],valu('v_mul_f32',v(MC[0]),sC,v(T[0])),valu('v_mul_f32',v(MC[1]),sC,v(T[1]))]
    ops=[pair_ops(par,k) for k in range(16)]
    if OPT.get('ord','2')=='1':
      for k in range(18):
        if k<16: out+=ops[k][0]
        if 1<=k<=16: out+=ops[k-1][1]
        if 2<=k<=17:
            out+=ops[k-2][2]
            if k-2<14: out.append(ops[k-2][3])
    else:
      for k in range(18):
        f=ops[k][0] if k<16 else [None,None]
        e=ops[k-1][1] if 1<=k<=16 else [None,None]
        ad=(ops[k-2][2]+[None])[:2] if 2<=k<=17 else [None,None]
        cv=ops[k-2][3] if 2<=k<=17 and k-2<14 else None
        o=[f[0],e[0],ad[0],f[1],e[1],ad[1],cv] if OPT.get('ord','2')=='2' else [e[0],f[0],ad[0],e[1],f[1],ad[1],cv]
        out+=[x for x in o if x is not None]
    tail=[ops[14][3],ops[15][3]]
    return out,tail
def check_ops(j,tail):
    if j==0:
        return [tail[0],tail[1],valu('v_mov_b32',v(L[0]),v(TS[0])),valu('v_mov_b32',v(L[1]),v(TS[1]))]
    return [tail[0],valu('v_max_f32',v(VX),v(TS[0]),v(TS[1])),tail[1],
            valu('v_cmp_lt_f32','vcc',sT,v(VX)),I(f's_cbranch_vccnz RARE_{j}','salu',['vcc'],[]),label(f'RET_{j}'),
            valu('v_add_f32',v(L[0]),v(L[0]),v(TS[0])),valu('v_add_f32',v(L[1]),v(L[1]),v(TS[1]))]
def rl_ops():
    a,b=S(1,0),S(1,0)+1
    return [valu('v_mov_b32',v(a),v(L[0])),valu('v_mov_b32',v(b),v(L[1])),nop(1),
            I(f'v_permlane32_swap_b32 {v(L[0])}, {v(a)}','valu',[v(L[0]),v(a)],[v(L[0]),v(a)]),
            I(f'v_permlane32_swap_b32 {v(L[1])}, {v(b)}','valu',[v(L[1]),v(b)],[v(L[1]),v(b)]),
            valu('v_add_f32',v(L[0]),v(L[0]),v(a)),valu('v_add_f32',v(L[1]),v(L[1]),v(b)),
            valu('v_rcp_f32',v(L[0]),v(L[0]),c=2.0,trans=True),valu('v_rcp_f32',v(L[1]),v(L[1]),c=2.0,trans=True)]
NST=15
def stamp(real=False):
    if OPT.get('dbg')!='1': return []
    o=[wait('s_waitcnt lgkmcnt(0)'),salu('s_memrealtime s[52:53]' if real else 's_memtime s[52:53]'),wait('s_waitcnt lgkmcnt(0)')]
    for i in range(NST-1,0,-1): o.append(salu(f's_mov_b32 s{64+i}, s{64+i-1}'))
    o.append(salu('s_mov_b32 s64, s52'))
    return o
def dump():
    if OPT.get('dbg')!='1': return []
    o=[salu(f's_cmp_eq_u32 s2, {OPT.get("wg","0")}'),I('s_cbranch_scc0 DONE','salu'),salu('s_cmp_eq_u32 s34, 0'),I('s_cbranch_scc0 DONE','salu'),
       salu('s_load_dwordx2 s[56:57], s[0:1], 32'),wait('s_waitcnt lgkmcnt(0)'),salu('s_mov_b32 s58, 256'),salu('s_mov_b32 s59, 0x20000'),salu('s_and_b32 s57, s57, 0xffff'),
       valu('v_mov_b32','v1','0')]
    for i in range(NST):
        o+=[valu('v_mov_b32','v2',f's{64+i}'),I(f'buffer_store_dword v2, v1, s[56:59], 0 offen offset:{4*(NST-1-i)}','store'),nop(1)]
    o.append(wait('s_waitcnt vmcnt(0)'))
    return o
def cost(x): return sum(i.c for i in x)
def weave(mf,misc,stream,first_gap=0):
    n=len(mf); out=[]
    tot=cost(stream)+sum(cost(m) for m in misc[first_gap:]); ng=n-first_gap
    done=0.0; si=0
    for g in range(n):
        if mf[g] is not None: out.append(mf[g])
        out+=misc[g]
        if g<first_gap: continue
        done+=cost(misc[g]); target=tot*(g-first_gap+1)/ng
        while si<len(stream) and (done+stream[si].c*0.5<=target or g==n-1):
            out.append(stream[si]); done+=stream[si].c; si+=1
    return out
def spread(misc,ops,g0,g1):
    n=len(ops)
    for x,o in enumerate(ops):
        g=g0+(x*(g1-g0+1))//n
        misc[g]+= o if isinstance(o,list) else [o]
CY=dict(mfma=8,trans=8,valu=4,salu=4,dsr=4,dsw=6,dma=int(OPT.get('cdma','4')),store=4,wait=4,nop=4,bar=4,label=0)
def cyc_of(i):
    if i.k=='nop': return 4*(i.tag+1)
    if 'cvt_pk' in i.t: return int(OPT.get('ccvt','4'))
    return CY[i.k]
D1=int(OPT.get('d1','2'));D2=int(OPT.get('d2','2'));D3=int(OPT.get('d3','1'));LA=int(OPT.get('la','3'))
BUD=int(OPT.get('bud','24'))
def elem_ops(par):
    f=[];e=[];ad=[];cv=[]
    for x in range(32):
        blk,i=x//16,x%16; t=T[x%8]; s_=S(par,blk)+i
        f.append(valu('v_fma_f32',v(t),v(s_),sC,f'-v{MC[blk]}'))
        e.append(valu('v_exp_f32',v(t),v(t),trans=True))
        if i==0: ad.append(None)
        elif i==1: ad.append(valu('v_add_f32',v(TS[blk]),v(T[(x-1)%8]),v(t)))
        else: ad.append(valu('v_add_f32',v(TS[blk]),v(TS[blk]),v(t)))
        if i%2==1: cv.append(valu('v_cvt_pk_bf16_f32',v(P(par,blk)+i//2),v(T[(x-1)%8]),v(t)))
    return f,e,ad,cv
def max_prefix(par):
    a=rowmax(par,0,T[0],T[2]); b=rowmax(par,1,T[1],T[3]); out=[]
    out+=a[:2]
    for x in range(2,len(a)): out+=[a[x],b[x-2]]
    out+=b[-2:]
    sa=swapmax(T[0],T[2]); sb=swapmax(T[1],T[3])
    out+=[sa[0],nop(0),sb[0],sa[1],sb[1],valu('v_mul_f32',v(MC[0]),sC,v(T[0])),valu('v_mul_f32',v(MC[1]),sC,v(T[1]))]
    return out
def step_pair(j,mfY,miscY,mfX,miscX,barY,endX):
    par=j%2; f,e,ad,cv=elem_ops(par)
    pre=max_prefix(par) if j==0 else []
    mf=mfY+mfX; misc=miscY+miscX
    out=[]; pos={}
    nf=ne=na=nc=0; n=[0]; lastadd=[-9]; over=0
    def put(i,key=None):
        out.append(i); n[0]+=1
        if key is not None: pos[key]=n[0]
    def old(key,d): return key in pos and n[0]-pos[key]>=d
    ysplit=None
    chk=[valu('v_max_f32',v(VX),v(TS[0]),v(TS[1])),valu('v_cmp_lt_f32','vcc',sT,v(VX))] if j else []
    for g in range(32):
        if g==16: ysplit=len(out)
        put(mf[g]); bud=BUD
        q=list(misc[g])
        if g==0 and barY:
            put(I('s_barrier','bar')); bud-=20
        mem=[i for i in q if i.k in('dsr','dma','salu','dsw','store')]; oth=[i for i in q if i.k not in('dsr','dma','salu','dsw','store')]
        tailw=[i for i in oth if i.k=='wait']; oth=[i for i in oth if i.k!='wait']
        bud-=sum(cyc_of(i) for i in q)
        for i in mem:
            if i.k=='dma' and out[-1].k=='salu' and 'm0' in out[-1].w: put(nop(0)); bud-=4
            put(i)
        if g==30: bud-=8 if j else 0
        if g==31: bud=(8 if j else 20)
        last=None
        force=(g==30)
        while True:
            cand=[]
            if pre:
                if g>=1: cand.append(('p',pre[0]))
            else:
                if na<32 and ad[na] is None and ne>na: na+=1; continue
                if ne<nf and old(('f',ne),D1): cand.append(('e',e[ne]))
                if na<ne and old(('e',na),D2) and n[0]-lastadd[0]>=D3: cand.append(('a',ad[na]))
                if nf<32 and (g>=2 or (g==1 and n[0]-ysp0>=MINA)) and (nf<16 or g>=3) and (nf<8 or (na>nf-8 and nc>(nf-8)//2)) and nf-ne<LA: cand.append(('f',f[nf]))
                if nc<16 and old(('e',2*nc+1),D2): cand.append(('c',cv[nc]))
            if oth: cand.append(('m',oth[0]))
            must=lambda c: c[0]=='m' or (force and (c[0] in 'efap' or (c[0]=='c' and nf<32))) or (g==31)
            pick=None
            for typ in ('e','f','a','c','p','m'):
                for c in cand:
                    if c[0]==typ and typ!=last and (cyc_of(c[1])<=bud or must(c)): pick=c; break
                if pick: break
            if not pick:
                for c in cand:
                    if cyc_of(c[1])<=bud or must(c): pick=c; break
            if not pick:
                if (force and na<32) or (g==31 and nc<16): put(nop(0)); continue
                break
            t,i=pick; last=t
            if t=='m': put(i); oth.pop(0); continue
            bud-=cyc_of(i)
            if t=='p': put(i); pre.pop(0)
            elif t=='e': put(i,('e',ne)); ne+=1
            elif t=='f': put(i,('f',nf)); nf+=1
            elif t=='a': put(i); lastadd[0]=n[0]; na+=1
            elif t=='c': put(i); nc+=1
        if g==0: ysp0=n[0]-(2 if not barY else 2)
        if bud<0: over+=-bud
        if g==30 and chk:
            if out[-1].w&{v(TS[0]),v(TS[1])}: put(nop(0))
            put(chk[0]); put(nop(0)) if OPT.get('chknop') else None; put(chk[1])
        if g==31 and j: put(I(f's_cbranch_vccnz RARE_{j}','salu',['vcc'],[])); put(label(f'RET_{j}'))
        for i in tailw: put(i)
    assert nf==ne==na==32 and nc==16 and not pre,(j,nf,ne,na,nc)
    OVER.append(over)
    return out[:ysplit], out[ysplit:]
OVER=[]; MINA=int(OPT.get('mina','4'))
def l_update(j):
    if j==0: return [valu('v_mov_b32',v(L[0]),v(TS[0])),valu('v_mov_b32',v(L[1]),v(TS[1]))]
    return [valu('v_add_f32',v(L[0]),v(L[0]),v(TS[0])),valu('v_add_f32',v(L[1]),v(L[1]),v(TS[1]))]
def miscY_for(j,moves):
    bar=(j%2==1)
    m=[[] for _ in range(16)]
    m[1 if bar else 0]+=l_update(j)
    spread(m,k_reads((j+2)%16),1,8)
    nQafter=0
    if j%2==1: pre,d=k_dma(((j+1)//2)%8)
    else: pre,d=v_dma(j//2)
    extra=j in(0,1,8,7,13)
    m[1 if bar else 0]+=pre; spread(m,d,2,8) if extra else spread(m,d,9,14)
    if j in(0,1):
        pre,d=q_dma(0,j); m[9]+=pre; spread(m,d,10,14)
    if j==8:
        pre,d=q_dma(1,0); m[9]+=pre; spread(m,d,10,14)
    if j in(7,13):
        spread(m,q_reads(0 if j==7 else 1),9,14); nQafter=8
    if j==15:
        spread(m,[[o] for o in rl_ops()],2,13)
    for x,o in enumerate(moves): m[9+(x%6)]+=o
    m[15].append(wait(f's_waitcnt lgkmcnt({nQafter})'))
    return m,bar
def miscX_for(j,moves):
    m=[[] for _ in range(16)]
    vr=v_reads(j)
    spread(m,vr,0,int(OPT.get('vlast','11')))
    if j==9:
        pre,d=q_dma(1,1); m[8]+=pre; spread(m,d,9,13)
    for x,o in enumerate(moves): m[6+x]+=o
    if j%2==1: m[15].append(wait('s_waitcnt vmcnt(NN) lgkmcnt(0)',f'B{((j+1)//2)%8}'))
    else: m[15].append(wait('s_waitcnt lgkmcnt(0)'))
    return m
def epilogue():
    t0=S(1,0)
    WA=[t0+i for i in range(8)]; RA=t0+8; SV=[t0+9,t0+10]; LN=t0+11; X=t0+12
    e=[]
    e+=[valu('v_mbcnt_lo_u32_b32',v(LN),'-1','0'),valu('v_mbcnt_hi_u32_b32',v(LN),'-1',v(LN)),
        valu('v_and_b32',v(X),'31',v(LN)),
        valu('v_lshlrev_b32',v(WA[0]),'7',v(X)),
        valu('v_and_b32',v(X),'7',v(X)),valu('v_lshl_add_u32',v(WA[0]),v(X),'4',v(WA[0])),
        valu('v_lshrrev_b32',v(X),'5',v(LN)),valu('v_lshl_add_u32',v(WA[0]),v(X),'3',v(WA[0])),
        valu('v_add_u32',v(WA[0]),sQS,v(WA[0]))]
    for p in range(1,8): e.append(valu('v_xor_b32',v(WA[p]),str(16*p) if 16*p<=64 else hex(16*p),v(WA[0])))
    e+=[valu('v_lshrrev_b32',v(X),'3',v(LN)),
        valu('v_and_b32',v(LN),'7',v(LN)),
        valu('v_lshlrev_b32',v(SV[0]),'8',v(X)),valu('v_lshl_add_u32',v(SV[0]),v(LN),'4',v(SV[0])),
        valu('v_add_u32',v(SV[1]),'0x1000',v(SV[0])),
        valu('v_xor_b32',v(LN),v(X),v(LN)),valu('v_lshlrev_b32',v(RA),'7',v(X)),
        valu('v_lshl_add_u32',v(RA),v(LN),'4',v(RA)),valu('v_add_u32',v(RA),sQS,v(RA)),
        salu(f's_add_u32 {sOB}, {sO}, 0x2000',[sO],[sOB])]
    def conv(p):
        blk,dh=p//2,p%2; o=[]
        sel='op_sel_hi:[1,0]' if blk==0 else 'op_sel:[0,1] op_sel_hi:[1,1]'
        for bb in range(2):
            base=O(blk,2*dh+bb)
            for g in range(4):
                r=base+4*g
                o+=[valu('v_pk_mul_f32',R('v',r,2),R('v',r,2),R('v',L[0],2),extra=sel),
                    valu('v_pk_mul_f32',R('v',r+2,2),R('v',r+2,2),R('v',L[0],2),extra=sel)]
            for g in range(4):
                r=base+4*g
                o+=[valu('v_cvt_pk_bf16_f32',v(r),v(r),v(r+1)),valu('v_cvt_pk_bf16_f32',v(r+1),v(r+2),v(r+3))]
            for g in range(4):
                o.append(dsw('ds_write_b64',v(WA[4*bb+g]),R('v',base+4*g,2),(p%2)*4096))
        for i in range(4): o.append(dsr('ds_read_b128',R('v',O(blk,2*dh)+4*i,4),v(RA),(p%2)*4096+1024*i))
        return o
    def sto(p):
        blk,dh=p//2,p%2
        return [store(R('v',O(blk,2*dh)+4*i,4),v(SV[i//2]),SRDO,sO if blk==0 else sOB,dh*128+(i%2)*2048,OPT['nto']) for i in range(4)]
    e+=conv(0)+conv(1)+[wait('s_waitcnt lgkmcnt(12)')]+sto(0)+conv(2)+[wait('s_waitcnt lgkmcnt(12)')]+sto(1)+conv(3)+[wait('s_waitcnt lgkmcnt(12)')]+sto(2)+[wait('s_waitcnt lgkmcnt(0)')]+sto(3)
    e+=[nop(1)]
    return e
def rare(j):
    par=j%2; e=[label(f'RARE_{j}'),nop(7),nop(7)]
    for blk in range(2):
        t,t2,al=T[0],T[1],T[2]
        e+=rowmax(par,blk,t,t2)+[nop(1)]+swapmax(t,t2)
        e+=[valu('v_mul_f32',v(t),sC,v(t)),valu('v_max_f32',v(t),v(t),v(MC[blk])),valu('v_sub_f32',v(al),v(MC[blk]),v(t)),
            valu('v_exp_f32',v(al),v(al),trans=True),valu('v_mov_b32',v(MC[blk]),v(t)),nop(0),valu('v_mul_f32',v(L[blk]),v(L[blk]),v(al))]
        for r in range(64*blk,64*blk+64): e.append(valu('v_mul_f32',v(r),v(r),v(al)))
        for i in range(8):
            f,ex,ad,cv=pair_ops(par,blk*8+i)
            e+=f+ex+[nop(0)]+ad+[cv]
    e+=[nop(1),I(f's_branch RET_{j}','salu')]
    return e
def build_loop():
    mv=q_moves(); seq=[]
    phases={}
    for j in range(16):
        jm=(j-1)%16
        mvY=[[x] for x in mv[8*(2*jm+1):8*(2*jm+1)+8]] if 0<=jm<=3 else []
        mvX=[[x] for x in mv[8*(2*j):8*(2*j)+8]] if 0<=j<=3 else []
        mY,barY=miscY_for(jm,mvY); mX=miscX_for(j,mvX)
        y,x=step_pair(j,pv_mfmas(jm,jm==0),mY,qk_mfmas((j+1)%16,useQN=(j==15 or j<=3)),mX,barY,None)
        phases[('Y',jm)]=y; phases[('X',j)]=x
    return phases
def fix_vmcnt(cyc):
    vm=[(x,i) for x,i in enumerate(cyc) if i.k in('dma','store')]
    n=len(cyc)
    for x,i in enumerate(cyc):
        if i.k=='wait' and i.tag and i.tag[0]=='B':
            Tb=int(i.tag[1:]); need={f'K{(Tb-3)%8}',f'V{(Tb-3)%8}'}
            if Tb==4: need.add('Q0')
            if Tb==7: need.add('Q1')
            cnt=0; found=set(); y=x
            best=None
            for step in range(1,n):
                q=cyc[(x-step)%n]
                if q.k in('dma','store'):
                    if q.tag in need and best is None: best=cnt
                    cnt+=1
                    if best is not None: break
            i.t=i.t.replace('NN',str(best));
            assert best<=63
def prologue():
    e=[]
    s=lambda t: e.append(salu(t))
    s('s_cmp_ge_u32 s2, 256'); e.append(I('s_cbranch_scc1 DONE','salu'))
    e+=stamp(True)+stamp()
    s('s_load_dwordx4 s[36:39], s[0:1], 0'); s('s_load_dwordx4 s[40:43], s[0:1], 16')
    e.append(valu('v_lshrrev_b32','v1','6','v0')); e.append(nop(0))
    e.append(I('v_readfirstlane_b32 s34, v1','valu',['v1'],['s34']))
    e.append(valu('v_and_b32','v0','63','v0'))
    ln='v0'; a,b,c_,d='v1','v2','v3','v4'
    e+=[valu('v_and_b32',a,'31',ln),valu('v_lshrrev_b32',b,'5',ln),valu('v_and_b32',c_,'15',ln)]
    for s_ in range(8):
        e+=[valu('v_or_b32',d,str(2*s_),b),valu('v_xor_b32',d,d,c_),valu('v_lshlrev_b32',d,'4',d),valu('v_lshl_add_u32',v(KA[s_]),a,'8',d)]
    e+=[valu('v_lshrrev_b32',a,'2',c_),valu('v_lshl_add_u32',b,b,'2',a),valu('v_lshlrev_b32',b,'8',b),
        valu('v_bfe_u32',d,ln,'4','1'),valu('v_lshl_add_u32',b,d,'5',b),valu('v_and_b32',d,'3',ln),valu('v_lshl_add_u32',b,d,'3',b),
        valu('v_add_u32',b,hex(VRING),b)]
    for bk in range(4):
        e+=[valu('v_xor_b32',d,str(bk),a),valu('v_lshl_add_u32',v(VA[bk]),d,'6',b)]
    e+=[valu('v_lshrrev_b32',a,'4',ln),valu('v_lshlrev_b32',b,'8',a)]
    for i in range(4):
        e+=[valu('v_or_b32',d,str(4*i),a),valu('v_xor_b32',d,d,c_),valu('v_lshl_add_u32',v(KD[i]),d,'4',b)]
    e+=[valu('v_lshrrev_b32',d,'2',c_),valu('v_xor_b32',d,d,a),valu('v_lshl_add_u32',d,d,'6',b),valu('v_and_b32',a,'3',ln),valu('v_lshl_add_u32',v(VD),a,'4',d)]
    s('s_and_b32 s35, s2, 7'); s('s_lshr_b32 s44, s2, 3'); s('s_and_b32 s45, s44, 1'); s('s_lshr_b32 s44, s44, 1')
    if OPT.get('rot','0')=='1': s('s_add_u32 s51, s35, s44'); s('s_and_b32 s51, s51, 7'); s('s_lshl_b32 s51, s51, 14')
    else: s('s_mov_b32 s51, 0')
    s('s_lshl_b32 s35, s35, 4'); s('s_add_u32 s35, s35, s44')
    s('s_lshl_b32 s35, s35, 17')
    s(f's_lshl_b32 {sW4}, s34, 12')
    s(f's_lshl_b32 {sQS}, s34, 13'); s(f's_add_u32 {sQS}, {sQS}, {STG}')
    s('s_lshl_b32 s45, s45, 16'); s('s_lshl_b32 s44, s34, 14'); s('s_add_u32 s45, s45, s44'); s(f's_add_u32 {sQ}, s35, s45')
    s(f's_mov_b32 {sO}, 0x7f000000')
    s(f's_mov_b32 {sC}, 0x3e0293ee'); s(f's_mov_b32 {sT}, {OPT["thr"]}'); s(f's_mov_b32 {sIT}, -1')
    rot=OPT.get('rot','0')=='1'
    s(f's_mov_b32 s49, {"0x1000000" if rot else hex(0x4000+JUMP)}'); s(f's_mov_b32 s50, {"0" if rot else "0x4000"}'); s('s_cmp_ge_u32 s34, 2'); s(f's_cselect_b32 {dK4}, s49, s50'); s(f's_cselect_b32 {dK5}, s50, s49')
    e.append(valu('v_mov_b32',v(VX),'0'))
    e.append(wait('s_waitcnt lgkmcnt(0)'))
    for srd,src in((4,36),(8,38),(12,40),(16,42)):
        s(f's_mov_b32 s{srd}, s{src}'); s(f's_and_b32 s{srd+1}, s{src+1}, 0xffff'); s(f's_mov_b32 s{srd+2}, 0x4000000'); s(f's_mov_b32 s{srd+3}, 0x20000')
    s(f's_lshl_b32 s46, s34, 13'); s(f's_add_u32 s46, s46, {VRING+4*8192}')
    for g in range(2):
        pre,d_=q_dma(0,g); e+=pre+[nop(0)]+d_
    for g in range(2):
        pre,d_=q_dma(1,g,'s46'); e+=pre+[nop(0)]+d_
    s('s_and_b32 s47, s34, 1'); s('s_lshl_b32 s47, s47, 7')
    e+=[nop(0),valu('v_xor_b32','v5','s47',v(KD[0])),valu('v_xor_b32','v6','s47',v(KD[1]))]
    s('s_lshl_b32 s47, s34, 11'); s(f's_add_u32 {sTMP}, s35, s47'); s(f's_add_u32 {sTMP}, {sTMP}, s51'); e.append(salu(f's_add_u32 m0, s47, {KRING+kslot(0)*8192}',[],['m0'])); e.append(nop(0))
    e+=[dma('v5',SRDK,sTMP,0,'K0p',OPT['ntkv']),dma('v6',SRDK,sTMP,1024,'K0p',OPT['ntkv'])]
    s('s_lshr_b32 s47, s34, 1'); s('s_add_u32 s47, s47, 1'); s('s_lshl_b32 s47, s47, 13'); s('s_and_b32 s48, s34, 1'); s('s_lshl_b32 s48, s48, 12')
    s(f's_add_u32 {sKo}, s47, s48'); s(f's_add_u32 {sKo}, {sKo}, s51'); s(f's_and_b32 {sKo}, {sKo}, 0x1ffff'); s(f's_add_u32 {sVo}, {sW4}, s51')
    s(f's_mov_b32 {sKb}, s35'); s(f's_mov_b32 {sVb}, s35')
    if not rot: s(f's_add_u32 {sK}, {sKb}, {sKo}'); s(f's_add_u32 {sV}, {sVb}, {sVo}')
    for Tp in(5,6):
        for fn,reg in((k_dma,sK),(v_dma,sV)):
            pre,d_=fn(Tp)
            e+= (pre[-2 if rot else -1:] if Tp==5 else pre)+[nop(0)]+d_
    e.append(wait('s_waitcnt vmcnt(16)'))
    e+=stamp()
    for blk,base in((0,sQS),(1,'s46')):
        for x in q_reads(blk,base): e+=x
        e.append(wait('s_waitcnt lgkmcnt(0)'))
    e.append(I('s_barrier','bar'))
    e+=k_reads(0)
    for fn in(k_dma,v_dma):
        pre,d_=fn(7); e+=pre+[nop(0)]+d_
    e.append(wait('s_waitcnt lgkmcnt(0)'))
    e+=qk_mfmas(0,True)
    e+=[wait('s_waitcnt vmcnt(16)')]
    return e,None,None
def main():
    ph=build_loop()
    epi=epilogue()
    top=[label('LOOP')]+stamp()+[salu(f's_cmp_lt_i32 {sIT}, 0'),I('s_cbranch_scc1 SKIP','salu')]
    mid=[label('AFTER')]+stamp()+[salu(f's_add_u32 {sIT}, {sIT}, 1'),salu(f's_cmp_eq_u32 {sIT}, 4'),I('s_cbranch_scc1 FIN','salu'),
         salu(f's_add_u32 {sQ}, {sQ}, 0x1000000',[sQ],[sQ])]
    mid.insert(len(mid)-1,salu(f's_mov_b32 {sO}, {sQ}',[sQ],[sO]))
    body=[]
    for j in range(16):
        body+=ph[('X',j)]+ph[('Y',j)]
    cyc=top+epi+mid+body
    fix_hazards(cyc)
    fix_vmcnt(cyc)
    pro,mY,eY=prologue()
    y15=[i for i in ph[('Y',15)] if i.k!='mfma']
    rl_t={o.t for o in rl_ops()}
    drop=lambda i: (i.w&{v(L[0]),v(L[1]),v(S(1,0)),v(S(1,0)+1)}) and i.k in('valu','trans')
    y15p=[nop(7),nop(7)]+[I(i.t,i.k,i.r,i.w,i.c,i.tag) for i in y15 if not drop(i)]
    skip=[label('SKIP')]+[store('v[0:3]',v(VX),SRDO,sO,0) for _ in range(16)]+[I('s_branch AFTER','salu')]
    allc=pro+y15p+[I('s_branch LOOP','salu')]
    errs=check_hazards(pro+y15p,'pro')+check_hazards(cyc+cyc[:60],'loop')
    rr=[]
    for j in range(1,16):
        r=rare(j); errs+=check_hazards(r,f'rare{j}'); rr+=r
    for x in errs: print('HAZARD',x,file=sys.stderr)
    txt=[]
    hdr=open('standalone__gqa_softmax__near_ridge.s.ref').read().split('\n')
    for l in hdr[:11]:
        if l.startswith('; @launch'): l='; @launch grid=(256,1,1) block=(256,1,1) lds=163840'
        if l.startswith(';'): txt.append(l)
    N='standalone__gqa_softmax__near_ridge_kernel'
    txt+=['.amdgcn_target "amdgcn-amd-amdhsa--gfx950"','.text',f'.globl {N}','.p2align 8',f'.type {N},@function',f'{N}:']
    def emit(seq):
        for i in seq:
            if OPT.get('nocomp')=='1' and (i.k in('mfma','trans') or (i.k=='valu' and ('fma' in i.t or 'cvt' in i.t or 'v_add_f32' in i.t or 'pk_mul' in i.t or 'max' in i.t or 'accvgpr' in i.t))): continue
            if OPT.get('nocomp')=='1' and OPT.get('nolds')=='1' and i.k in('dsr','dsw'): continue
            if OPT.get('nords')=='1' and i.k=='dsr' and seq is cyc: continue
            if OPT.get('noexp')=='1' and i.k=='trans' and seq is cyc: continue
            if OPT.get('novalu')=='1' and i.k in('trans','valu') and seq is cyc and 'cmp' not in i.t: continue
            if OPT.get('nobar')=='1' and i.k=='bar' and seq is cyc: continue
            if OPT.get('nodma')=='1' and i.k=='dma' and i.tag!='K0p': continue
            if OPT.get('nost')=='1' and i.k=='store' and i.tag=='st': continue
            txt.append(i.t if i.k=='label' else '  '+i.t)
    emit(allc);
    txt.append('.p2align 6'); emit(cyc); txt.append('  s_branch LOOP')
    emit([I(f'v_mov_b32 {v(VX)}, 0','valu')] and []); emit(skip); emit(rr)
    txt.append('FIN:'); emit([wait('s_waitcnt vmcnt(0)')]+stamp()+stamp(True)+dump() if OPT.get('dbg')=='1' else [])
    txt+=['DONE:','  s_endpgm','.section .rodata,"a"','.p2align 6',f'.amdhsa_kernel {N}','  .amdhsa_next_free_vgpr 448','  .amdhsa_next_free_sgpr 96',
          '  .amdhsa_accum_offset 256','  .amdhsa_group_segment_fixed_size 0','  .amdhsa_kernarg_size 48','  .amdhsa_user_sgpr_count 2',
          '  .amdhsa_user_sgpr_kernarg_segment_ptr 1','  .amdhsa_system_sgpr_workgroup_id_x 1','.end_amdhsa_kernel','']
    open(sys.argv[1],'w').write('\n'.join(txt))
    nm=sum(1 for i in cyc if i.k=='mfma'); print('over',OVER,sum(OVER),file=sys.stderr); print('loop instrs',len(cyc),'mfma',nm,'cost units',sum(i.c for i in cyc), [i.t for i in cyc if i.k=='wait' and i.tag],file=sys.stderr)
main()
```

```python
import sys
from lib import *
OPT=dict(ntq=' nt',ntkv=' nt',nto=' nt',thr='0x44800000')
for a in sys.argv[2:]:
    k,v=a.split('='); OPT[k]=v.replace('_',' ')
def O(blk,b): return 64*blk+16*b
def S(par,blk): return 128+32*par+16*blk
def P(par,blk): return 192+16*par+8*blk
T=[224+i for i in range(8)]
MC=[232,233]; L=[234,235]; TS=[236,237]
KA=[238+i for i in range(8)]; VA=[246+i for i in range(4)]; KD=[250+i for i in range(4)]; VD=254; VX=255
QC=0; QN=64; KF=128; VF=160
SRDQ,SRDK,SRDV,SRDO='s[4:7]','s[8:11]','s[12:15]','s[16:19]'
sW4,sK,sV,sQ,sO,dK4,dK5,sIT,sC,sT,sQS,sTMP,sOB,sTMP2='s20','s21','s22','s23','s24','s25','s26','s27','s28','s29','s30','s31','s32','s33'
sKo,sKb,sVo,sVb='s60','s61','s62','s63'
KRING=0; VRING=65536; STG=131072
JUMP=127*131072
def v(n): return f'v{n}'
def kslot(u): return (u+1)%8
def vslot(u): return u%8
def qk_mfmas(j1,useQN):
    par=j1%2; qb=QN if useQN else QC; out=[]
    order=[(s,blk) for s in range(8) for blk in range(2)] if OPT.get('qkord','alt')=='alt' else [(s,blk) for blk in range(2) for s in range(8)]
    for s,blk in order:
        if 1:
            d=R('v',S(par,blk),16)
            out.append(mfma(d,R('a',KF+4*s,4),R('a',qb+32*blk+4*s,4),'0' if s==0 else d))
    return out
def pv_mfmas(j,first):
    par=j%2; out=[]
    order=[(t,b,blk) for t in range(2) for b in range(4) for blk in range(2)] if OPT.get('pvord','alt')=='alt' else [(t,b,blk) for b in range(4) for blk in range(2) for t in range(2)]
    for t,b,blk in order:
        if 1:
            if 1:
                d=R('v',O(blk,b),16)
                out.append(mfma(d,R('a',VF+4*(4*t+b),4),R('v',P(par,blk)+4*t,4),'0' if (first and t==0) else d))
    return out
def k_reads(u):
    return [dsr('ds_read_b128',R('a',KF+4*s,4),v(KA[s]),KRING+kslot(u)*8192) for s in range(8)]
def v_reads(u):
    out=[]
    order=[(t,b) for t in range(2) for b in range(4)] if OPT.get('pvord','alt')=='alt' else [(t,b) for b in range(4) for t in range(2)]
    for t,b in order:
        if 1:
            for uu in range(2):
                out.append(dsr('ds_read_b64_tr_b16',R('a',VF+4*(4*t+b)+2*uu,2),v(VA[b]),vslot(u)*8192+(16*t+8*uu)*256))
    return out
def k_dma(Tp):
    if OPT.get('rot','0')!='1':
        inc = dK4 if Tp==4 else dK5 if Tp==5 else '0x4000'
        pre=[salu(f's_add_u32 {sK}, {sK}, {inc}',[sK],[sK]), salu(f's_add_u32 m0, {sW4}, {KRING+((2*Tp)%8)*8192}',[sW4],['m0'])]
        return pre,[dma(v(KD[i]),SRDK,sK,1024*i,f'K{Tp}',OPT['ntkv']) for i in range(4)]
    pre=[salu(f's_add_u32 {sKo}, {sKo}, 0x4000'),salu(f's_and_b32 {sKo}, {sKo}, 0x1ffff')]
    if Tp in(4,5): pre.append(salu(f's_add_u32 {sKb}, {sKb}, {dK4 if Tp==4 else dK5}'))
    pre+=[salu(f's_add_u32 {sK}, {sKb}, {sKo}',[],[sK]), salu(f's_add_u32 m0, {sW4}, {KRING+((2*Tp)%8)*8192}',[sW4],['m0'])]
    return pre,[dma(v(KD[i]),SRDK,sK,1024*i,f'K{Tp}',OPT['ntkv']) for i in range(4)]
def v_dma(Tp):
    if OPT.get('rot','0')!='1':
        inc = hex(0x4000+JUMP) if Tp==5 else '0x4000'
        pre=[salu(f's_add_u32 {sV}, {sV}, {inc}',[sV],[sV]), salu(f's_add_u32 m0, {sW4}, {VRING+((2*Tp+6)%8)*8192}',[sW4],['m0'])]
        return pre,[dma(v(VD),SRDV,sV,1024*i,f'V{Tp}',OPT['ntkv']) for i in range(4)]
    pre=[salu(f's_add_u32 {sVo}, {sVo}, 0x4000'),salu(f's_and_b32 {sVo}, {sVo}, 0x1ffff')]
    if Tp==5: pre.append(salu(f's_add_u32 {sVb}, {sVb}, 0x1000000'))
    pre+=[salu(f's_add_u32 {sV}, {sVb}, {sVo}',[],[sV]), salu(f's_add_u32 m0, {sW4}, {VRING+((2*Tp+6)%8)*8192}',[sW4],['m0'])]
    return pre,[dma(v(VD),SRDV,sV,1024*i,f'V{Tp}',OPT['ntkv']) for i in range(4)]
def q_dma(blk,g,ldsbase=None):
    pre=[salu(f's_add_u32 {sTMP}, {sQ}, {blk*8192+g*4096}',[sQ],[sTMP]),
         salu(f's_add_u32 m0, {sQS}, {g*4096}',[sQS],['m0']) if ldsbase is None else salu(f's_add_u32 m0, {ldsbase}, {g*4096}',[ldsbase],['m0'])]
    return pre,[dma(v(KD[i]),SRDQ,sTMP,1024*i,f'Q{blk}',OPT['ntq']) for i in range(4)]
def q_reads(blk,base=sQS):
    out=[]
    for s in range(8):
        t=S(1,0)+s
        out.append([I(f'v_add_u32 {v(t)}, {base}, {v(KA[s])}','salu',[v(KA[s])],[v(t)]), dsr('ds_read_b128',R('a',QN+32*blk+4*s,4),v(t),0)])
    return out
def q_moves(): return [valu('v_accvgpr_mov_b32',f'a{QC+i}',f'a{QN+i}') for i in range(64)]
def pair_ops(par,k):
    blk,i=k//8,k%8; a,b=T[2*(k%4)],T[2*(k%4)+1]; s=S(par,blk)+2*i
    f=[valu('v_fma_f32',v(a),v(s),sC,f'-v{MC[blk]}'),valu('v_fma_f32',v(b),v(s+1),sC,f'-v{MC[blk]}')]
    e=[valu('v_exp_f32',v(a),v(a),c=2.0,trans=True),valu('v_exp_f32',v(b),v(b),c=2.0,trans=True)]
    if i==0: ad=[valu('v_add_f32',v(TS[blk]),v(a),v(b))]
    else: ad=[valu('v_add_f32',v(TS[blk]),v(TS[blk]),v(a)),valu('v_add_f32',v(TS[blk]),v(TS[blk]),v(b))]
    cv=valu('v_cvt_pk_bf16_f32',v(P(par,blk)+i),v(a),v(b),c=1.15)
    return f,e,ad,cv
def rowmax(par,blk,t,t2):
    s=S(par,blk); out=[valu('v_max3_f32',v(t),v(s),v(s+1),v(s+2))]
    for i in range(3,15,2): out.append(valu('v_max3_f32',v(t),v(t),v(s+i),v(s+i+1)))
    out.append(valu('v_max_f32',v(t),v(t),v(s+15)))
    out.append(valu('v_mov_b32',v(t2),v(t)))
    return out
def swapmax(t,t2): return [I(f'v_permlane32_swap_b32 {v(t)}, {v(t2)}','valu',[v(t),v(t2)],[v(t),v(t2)]), valu('v_max_f32',v(t),v(t),v(t2))]
def softmax_stream(j):
    par=j%2; out=[]
    if j==0:
        a=rowmax(par,0,T[0],T[2]); b=rowmax(par,1,T[1],T[3])
        out+=a[:2]
        for x in range(2,len(a)): out+=[a[x],b[x-2]]
        out+=b[-2:]
        sa=swapmax(T[0],T[2]); sb=swapmax(T[1],T[3])
        out+=[sa[0],nop(0),sb[0],sa[1],sb[1],valu('v_mul_f32',v(MC[0]),sC,v(T[0])),valu('v_mul_f32',v(MC[1]),sC,v(T[1]))]
    ops=[pair_ops(par,k) for k in range(16)]
    if OPT.get('ord','2')=='1':
      for k in range(18):
        if k<16: out+=ops[k][0]
        if 1<=k<=16: out+=ops[k-1][1]
        if 2<=k<=17:
            out+=ops[k-2][2]
            if k-2<14: out.append(ops[k-2][3])
    else:
      for k in range(18):
        f=ops[k][0] if k<16 else [None,None]
        e=ops[k-1][1] if 1<=k<=16 else [None,None]
        ad=(ops[k-2][2]+[None])[:2] if 2<=k<=17 else [None,None]
        cv=ops[k-2][3] if 2<=k<=17 and k-2<14 else None
        o=[f[0],e[0],ad[0],f[1],e[1],ad[1],cv] if OPT.get('ord','2')=='2' else [e[0],f[0],ad[0],e[1],f[1],ad[1],cv]
        out+=[x for x in o if x is not None]
    tail=[ops[14][3],ops[15][3]]
    return out,tail
def check_ops(j,tail):
    if j==0:
        return [tail[0],tail[1],valu('v_mov_b32',v(L[0]),v(TS[0])),valu('v_mov_b32',v(L[1]),v(TS[1]))]
    return [tail[0],valu('v_max_f32',v(VX),v(TS[0]),v(TS[1])),tail[1],
            valu('v_cmp_lt_f32','vcc',sT,v(VX)),I(f's_cbranch_vccnz RARE_{j}','salu',['vcc'],[]),label(f'RET_{j}'),
            valu('v_add_f32',v(L[0]),v(L[0]),v(TS[0])),valu('v_add_f32',v(L[1]),v(L[1]),v(TS[1]))]
def rl_ops():
    a,b=S(1,0),S(1,0)+1
    return [valu('v_mov_b32',v(a),v(L[0])),valu('v_mov_b32',v(b),v(L[1])),nop(1),
            I(f'v_permlane32_swap_b32 {v(L[0])}, {v(a)}','valu',[v(L[0]),v(a)],[v(L[0]),v(a)]),
            I(f'v_permlane32_swap_b32 {v(L[1])}, {v(b)}','valu',[v(L[1]),v(b)],[v(L[1]),v(b)]),
            valu('v_add_f32',v(L[0]),v(L[0]),v(a)),valu('v_add_f32',v(L[1]),v(L[1]),v(b)),
            valu('v_rcp_f32',v(L[0]),v(L[0]),c=2.0,trans=True),valu('v_rcp_f32',v(L[1]),v(L[1]),c=2.0,trans=True)]
NST=15
def stamp(real=False):
    if OPT.get('dbg')!='1': return []
    o=[wait('s_waitcnt lgkmcnt(0)'),salu('s_memrealtime s[52:53]' if real else 's_memtime s[52:53]'),wait('s_waitcnt lgkmcnt(0)')]
    for i in range(NST-1,0,-1): o.append(salu(f's_mov_b32 s{64+i}, s{64+i-1}'))
    o.append(salu('s_mov_b32 s64, s52'))
    return o
def dump():
    if OPT.get('dbg')!='1': return []
    o=[salu(f's_cmp_eq_u32 s2, {OPT.get("wg","0")}'),I('s_cbranch_scc0 DONE','salu'),salu('s_cmp_eq_u32 s34, 0'),I('s_cbranch_scc0 DONE','salu'),
       salu('s_load_dwordx2 s[56:57], s[0:1], 32'),wait('s_waitcnt lgkmcnt(0)'),salu('s_mov_b32 s58, 256'),salu('s_mov_b32 s59, 0x20000'),salu('s_and_b32 s57, s57, 0xffff'),
       valu('v_mov_b32','v1','0')]
    for i in range(NST):
        o+=[valu('v_mov_b32','v2',f's{64+i}'),I(f'buffer_store_dword v2, v1, s[56:59], 0 offen offset:{4*(NST-1-i)}','store'),nop(1)]
    o.append(wait('s_waitcnt vmcnt(0)'))
    return o
def cost(x): return sum(i.c for i in x)
def weave(mf,misc,stream,first_gap=0):
    n=len(mf); out=[]
    tot=cost(stream)+sum(cost(m) for m in misc[first_gap:]); ng=n-first_gap
    done=0.0; si=0
    for g in range(n):
        if mf[g] is not None: out.append(mf[g])
        out+=misc[g]
        if g<first_gap: continue
        done+=cost(misc[g]); target=tot*(g-first_gap+1)/ng
        while si<len(stream) and (done+stream[si].c*0.5<=target or g==n-1):
            out.append(stream[si]); done+=stream[si].c; si+=1
    return out
def spread(misc,ops,g0,g1):
    n=len(ops)
    for x,o in enumerate(ops):
        g=g0+(x*(g1-g0+1))//n
        misc[g]+= o if isinstance(o,list) else [o]
CY=dict(mfma=8,trans=8,valu=4,salu=4,dsr=4,dsw=6,dma=int(OPT.get('cdma','4')),store=4,wait=4,nop=4,bar=4,label=0)
def cyc_of(i):
    if i.k=='nop': return 4*(i.tag+1)
    if 'cvt_pk' in i.t: return int(OPT.get('ccvt','4'))
    return CY[i.k]
D1=int(OPT.get('d1','2'));D2=int(OPT.get('d2','2'));D3=int(OPT.get('d3','1'));LA=int(OPT.get('la','3'))
BUD=int(OPT.get('bud','24'))
def elem_ops(par):
    f=[];e=[];ad=[];cv=[]
    for x in range(32):
        blk,i=x//16,x%16; t=T[x%8]; s_=S(par,blk)+i
        f.append(valu('v_fma_f32',v(t),v(s_),sC,f'-v{MC[blk]}'))
        e.append(valu('v_exp_f32',v(t),v(t),trans=True))
        if i==0: ad.append(None)
        elif i==1: ad.append(valu('v_add_f32',v(TS[blk]),v(T[(x-1)%8]),v(t)))
        else: ad.append(valu('v_add_f32',v(TS[blk]),v(TS[blk]),v(t)))
        if i%2==1: cv.append(valu('v_cvt_pk_bf16_f32',v(P(par,blk)+i//2),v(T[(x-1)%8]),v(t)))
    return f,e,ad,cv
def max_prefix(par):
    a=rowmax(par,0,T[0],T[2]); b=rowmax(par,1,T[1],T[3]); out=[]
    out+=a[:2]
    for x in range(2,len(a)): out+=[a[x],b[x-2]]
    out+=b[-2:]
    sa=swapmax(T[0],T[2]); sb=swapmax(T[1],T[3])
    out+=[sa[0],nop(0),sb[0],sa[1],sb[1],valu('v_mul_f32',v(MC[0]),sC,v(T[0])),valu('v_mul_f32',v(MC[1]),sC,v(T[1]))]
    return out
def step_pair(j,mfY,miscY,mfX,miscX,barY,endX):
    par=j%2; f,e,ad,cv=elem_ops(par)
    pre=max_prefix(par) if j==0 else []
    mf=mfY+mfX; misc=miscY+miscX
    out=[]; pos={}
    nf=ne=na=nc=0; n=[0]; lastadd=[-9]; over=0
    def put(i,key=None):
        out.append(i); n[0]+=1
        if key is not None: pos[key]=n[0]
    def old(key,d): return key in pos and n[0]-pos[key]>=d
    ysplit=None
    chk=[valu('v_max_f32',v(VX),v(TS[0]),v(TS[1])),valu('v_cmp_lt_f32','vcc',sT,v(VX))] if j else []
    for g in range(32):
        if g==16: ysplit=len(out)
        put(mf[g]); bud=BUD
        q=list(misc[g])
        if g==0 and barY:
            put(I('s_barrier','bar')); bud-=20
        mem=[i for i in q if i.k in('dsr','dma','salu','dsw','store')]; oth=[i for i in q if i.k not in('dsr','dma','salu','dsw','store')]
        tailw=[i for i in oth if i.k=='wait']; oth=[i for i in oth if i.k!='wait']
        bud-=sum(cyc_of(i) for i in q)
        for i in mem:
            if i.k=='dma' and out[-1].k=='salu' and 'm0' in out[-1].w: put(nop(0)); bud-=4
            put(i)
        if g==30: bud-=8 if j else 0
        if g==31: bud=(8 if j else 20)
        last=None
        force=(g==30)
        while True:
            cand=[]
            if pre:
                if g>=1: cand.append(('p',pre[0]))
            else:
                if na<32 and ad[na] is None and ne>na: na+=1; continue
                if ne<nf and old(('f',ne),D1): cand.append(('e',e[ne]))
                if na<ne and old(('e',na),D2) and n[0]-lastadd[0]>=D3: cand.append(('a',ad[na]))
                if nf<32 and (g>=2 or (g==1 and n[0]-ysp0>=MINA)) and (nf<16 or g>=3) and (nf<8 or (na>nf-8 and nc>(nf-8)//2)) and nf-ne<LA: cand.append(('f',f[nf]))
                if nc<16 and old(('e',2*nc+1),D2): cand.append(('c',cv[nc]))
            if oth: cand.append(('m',oth[0]))
            must=lambda c: c[0]=='m' or (force and (c[0] in 'efap' or (c[0]=='c' and nf<32))) or (g==31)
            pick=None
            for typ in ('e','f','a','c','p','m'):
                for c in cand:
                    if c[0]==typ and typ!=last and (cyc_of(c[1])<=bud or must(c)): pick=c; break
                if pick: break
            if not pick:
                for c in cand:
                    if cyc_of(c[1])<=bud or must(c): pick=c; break
            if not pick:
                if (force and na<32) or (g==31 and nc<16): put(nop(0)); continue
                break
            t,i=pick; last=t
            if t=='m': put(i); oth.pop(0); continue
            bud-=cyc_of(i)
            if t=='p': put(i); pre.pop(0)
            elif t=='e': put(i,('e',ne)); ne+=1
            elif t=='f': put(i,('f',nf)); nf+=1
            elif t=='a': put(i); lastadd[0]=n[0]; na+=1
            elif t=='c': put(i); nc+=1
        if g==0: ysp0=n[0]-(2 if not barY else 2)
        if bud<0: over+=-bud
        if g==30 and chk:
            if out[-1].w&{v(TS[0]),v(TS[1])}: put(nop(0))
            put(chk[0]); put(nop(0)) if OPT.get('chknop') else None; put(chk[1])
        if g==31 and j: put(I(f's_cbranch_vccnz RARE_{j}','salu',['vcc'],[])); put(label(f'RET_{j}'))
        for i in tailw: put(i)
    assert nf==ne==na==32 and nc==16 and not pre,(j,nf,ne,na,nc)
    OVER.append(over)
    return out[:ysplit], out[ysplit:]
OVER=[]; MINA=int(OPT.get('mina','4'))
def l_update(j):
    if j==0: return [valu('v_mov_b32',v(L[0]),v(TS[0])),valu('v_mov_b32',v(L[1]),v(TS[1]))]
    return [valu('v_add_f32',v(L[0]),v(L[0]),v(TS[0])),valu('v_add_f32',v(L[1]),v(L[1]),v(TS[1]))]
def miscY_for(j,moves):
    bar=(j%2==1)
    m=[[] for _ in range(16)]
    m[1 if bar else 0]+=l_update(j)
    spread(m,k_reads((j+2)%16),1,8)
    nQafter=0
    if j%2==1: pre,d=k_dma(((j+1)//2)%8)
    else: pre,d=v_dma(j//2)
    extra=j in(0,1,8,7,13)
    m[1 if bar else 0]+=pre; spread(m,d,2,8) if extra else spread(m,d,9,14)
    if j in(0,1):
        pre,d=q_dma(0,j); m[9]+=pre; spread(m,d,10,14)
    if j==8:
        pre,d=q_dma(1,0); m[9]+=pre; spread(m,d,10,14)
    if j in(7,13):
        spread(m,q_reads(0 if j==7 else 1),9,14); nQafter=8
    if j==15:
        spread(m,[[o] for o in rl_ops()],2,13)
    for x,o in enumerate(moves): m[9+(x%6)]+=o
    m[15].append(wait(f's_waitcnt lgkmcnt({nQafter})'))
    return m,bar
def miscX_for(j,moves):
    m=[[] for _ in range(16)]
    vr=v_reads(j)
    spread(m,vr,0,int(OPT.get('vlast','11')))
    if j==9:
        pre,d=q_dma(1,1); m[8]+=pre; spread(m,d,9,13)
    for x,o in enumerate(moves): m[6+x]+=o
    if j%2==1: m[15].append(wait('s_waitcnt vmcnt(NN) lgkmcnt(0)',f'B{((j+1)//2)%8}'))
    else: m[15].append(wait('s_waitcnt lgkmcnt(0)'))
    return m
def epilogue():
    t0=S(1,0)
    WA=[t0+i for i in range(8)]; RA=t0+8; SV=[t0+9,t0+10]; LN=t0+11; X=t0+12
    e=[]
    e+=[valu('v_mbcnt_lo_u32_b32',v(LN),'-1','0'),valu('v_mbcnt_hi_u32_b32',v(LN),'-1',v(LN)),
        valu('v_and_b32',v(X),'31',v(LN)),
        valu('v_lshlrev_b32',v(WA[0]),'7',v(X)),
        valu('v_and_b32',v(X),'7',v(X)),valu('v_lshl_add_u32',v(WA[0]),v(X),'4',v(WA[0])),
        valu('v_lshrrev_b32',v(X),'5',v(LN)),valu('v_lshl_add_u32',v(WA[0]),v(X),'3',v(WA[0])),
        valu('v_add_u32',v(WA[0]),sQS,v(WA[0]))]
    for p in range(1,8): e.append(valu('v_xor_b32',v(WA[p]),str(16*p) if 16*p<=64 else hex(16*p),v(WA[0])))
    e+=[valu('v_lshrrev_b32',v(X),'3',v(LN)),
        valu('v_and_b32',v(LN),'7',v(LN)),
        valu('v_lshlrev_b32',v(SV[0]),'8',v(X)),valu('v_lshl_add_u32',v(SV[0]),v(LN),'4',v(SV[0])),
        valu('v_add_u32',v(SV[1]),'0x1000',v(SV[0])),
        valu('v_xor_b32',v(LN),v(X),v(LN)),valu('v_lshlrev_b32',v(RA),'7',v(X)),
        valu('v_lshl_add_u32',v(RA),v(LN),'4',v(RA)),valu('v_add_u32',v(RA),sQS,v(RA)),
        salu(f's_add_u32 {sOB}, {sO}, 0x2000',[sO],[sOB])]
    def conv(p):
        blk,dh=p//2,p%2; o=[]
        sel='op_sel_hi:[1,0]' if blk==0 else 'op_sel:[0,1] op_sel_hi:[1,1]'
        for bb in range(2):
            base=O(blk,2*dh+bb)
            for g in range(4):
                r=base+4*g
                o+=[valu('v_pk_mul_f32',R('v',r,2),R('v',r,2),R('v',L[0],2),extra=sel),
                    valu('v_pk_mul_f32',R('v',r+2,2),R('v',r+2,2),R('v',L[0],2),extra=sel)]
            for g in range(4):
                r=base+4*g
                o+=[valu('v_cvt_pk_bf16_f32',v(r),v(r),v(r+1)),valu('v_cvt_pk_bf16_f32',v(r+1),v(r+2),v(r+3))]
            for g in range(4):
                o.append(dsw('ds_write_b64',v(WA[4*bb+g]),R('v',base+4*g,2),(p%2)*4096))
        for i in range(4): o.append(dsr('ds_read_b128',R('v',O(blk,2*dh)+4*i,4),v(RA),(p%2)*4096+1024*i))
        return o
    def sto(p):
        blk,dh=p//2,p%2
        return [store(R('v',O(blk,2*dh)+4*i,4),v(SV[i//2]),SRDO,sO if blk==0 else sOB,dh*128+(i%2)*2048,OPT['nto']) for i in range(4)]
    e+=conv(0)+conv(1)+[wait('s_waitcnt lgkmcnt(12)')]+sto(0)+conv(2)+[wait('s_waitcnt lgkmcnt(12)')]+sto(1)+conv(3)+[wait('s_waitcnt lgkmcnt(12)')]+sto(2)+[wait('s_waitcnt lgkmcnt(0)')]+sto(3)
    e+=[nop(1)]
    return e
def rare(j):
    par=j%2; e=[label(f'RARE_{j}'),nop(7),nop(7)]
    for blk in range(2):
        t,t2,al=T[0],T[1],T[2]
        e+=rowmax(par,blk,t,t2)+[nop(1)]+swapmax(t,t2)
        e+=[valu('v_mul_f32',v(t),sC,v(t)),valu('v_max_f32',v(t),v(t),v(MC[blk])),valu('v_sub_f32',v(al),v(MC[blk]),v(t)),
            valu('v_exp_f32',v(al),v(al),trans=True),valu('v_mov_b32',v(MC[blk]),v(t)),nop(0),valu('v_mul_f32',v(L[blk]),v(L[blk]),v(al))]
        for r in range(64*blk,64*blk+64): e.append(valu('v_mul_f32',v(r),v(r),v(al)))
        for i in range(8):
            f,ex,ad,cv=pair_ops(par,blk*8+i)
            e+=f+ex+[nop(0)]+ad+[cv]
    e+=[nop(1),I(f's_branch RET_{j}','salu')]
    return e
def build_loop():
    mv=q_moves(); seq=[]
    phases={}
    for j in range(16):
        jm=(j-1)%16
        mvY=[[x] for x in mv[8*(2*jm+1):8*(2*jm+1)+8]] if 0<=jm<=3 else []
        mvX=[[x] for x in mv[8*(2*j):8*(2*j)+8]] if 0<=j<=3 else []
        mY,barY=miscY_for(jm,mvY); mX=miscX_for(j,mvX)
        y,x=step_pair(j,pv_mfmas(jm,jm==0),mY,qk_mfmas((j+1)%16,useQN=(j==15 or j<=3)),mX,barY,None)
        phases[('Y',jm)]=y; phases[('X',j)]=x
    return phases
def fix_vmcnt(cyc):
    vm=[(x,i) for x,i in enumerate(cyc) if i.k in('dma','store')]
    n=len(cyc)
    for x,i in enumerate(cyc):
        if i.k=='wait' and i.tag and i.tag[0]=='B':
            Tb=int(i.tag[1:]); need={f'K{(Tb-3)%8}',f'V{(Tb-3)%8}'}
            if Tb==4: need.add('Q0')
            if Tb==7: need.add('Q1')
            cnt=0; found=set(); y=x
            best=None
            for step in range(1,n):
                q=cyc[(x-step)%n]
                if q.k in('dma','store'):
                    if q.tag in need and best is None: best=cnt
                    cnt+=1
                    if best is not None: break
            i.t=i.t.replace('NN',str(best));
            assert best<=63
def prologue():
    e=[]
    s=lambda t: e.append(salu(t))
    s('s_cmp_ge_u32 s2, 256'); e.append(I('s_cbranch_scc1 DONE','salu'))
    e+=stamp(True)+stamp()
    s('s_load_dwordx4 s[36:39], s[0:1], 0'); s('s_load_dwordx4 s[40:43], s[0:1], 16')
    e.append(valu('v_lshrrev_b32','v1','6','v0')); e.append(nop(0))
    e.append(I('v_readfirstlane_b32 s34, v1','valu',['v1'],['s34']))
    e.append(valu('v_and_b32','v0','63','v0'))
    ln='v0'; a,b,c_,d='v1','v2','v3','v4'
    e+=[valu('v_and_b32',a,'31',ln),valu('v_lshrrev_b32',b,'5',ln),valu('v_and_b32',c_,'15',ln)]
    for s_ in range(8):
        e+=[valu('v_or_b32',d,str(2*s_),b),valu('v_xor_b32',d,d,c_),valu('v_lshlrev_b32',d,'4',d),valu('v_lshl_add_u32',v(KA[s_]),a,'8',d)]
    e+=[valu('v_lshrrev_b32',a,'2',c_),valu('v_lshl_add_u32',b,b,'2',a),valu('v_lshlrev_b32',b,'8',b),
        valu('v_bfe_u32',d,ln,'4','1'),valu('v_lshl_add_u32',b,d,'5',b),valu('v_and_b32',d,'3',ln),valu('v_lshl_add_u32',b,d,'3',b),
        valu('v_add_u32',b,hex(VRING),b)]
    for bk in range(4):
        e+=[valu('v_xor_b32',d,str(bk),a),valu('v_lshl_add_u32',v(VA[bk]),d,'6',b)]
    e+=[valu('v_lshrrev_b32',a,'4',ln),valu('v_lshlrev_b32',b,'8',a)]
    for i in range(4):
        e+=[valu('v_or_b32',d,str(4*i),a),valu('v_xor_b32',d,d,c_),valu('v_lshl_add_u32',v(KD[i]),d,'4',b)]
    e+=[valu('v_lshrrev_b32',d,'2',c_),valu('v_xor_b32',d,d,a),valu('v_lshl_add_u32',d,d,'6',b),valu('v_and_b32',a,'3',ln),valu('v_lshl_add_u32',v(VD),a,'4',d)]
    s('s_and_b32 s35, s2, 7'); s('s_lshr_b32 s44, s2, 3'); s('s_and_b32 s45, s44, 1'); s('s_lshr_b32 s44, s44, 1')
    if OPT.get('rot','0')=='1': s('s_add_u32 s51, s35, s44'); s('s_and_b32 s51, s51, 7'); s('s_lshl_b32 s51, s51, 14')
    else: s('s_mov_b32 s51, 0')
    s('s_lshl_b32 s35, s35, 4'); s('s_add_u32 s35, s35, s44')
    s('s_lshl_b32 s35, s35, 17')
    s(f's_lshl_b32 {sW4}, s34, 12')
    s(f's_lshl_b32 {sQS}, s34, 13'); s(f's_add_u32 {sQS}, {sQS}, {STG}')
    s('s_lshl_b32 s45, s45, 16'); s('s_lshl_b32 s44, s34, 14'); s('s_add_u32 s45, s45, s44'); s(f's_add_u32 {sQ}, s35, s45')
    s(f's_mov_b32 {sO}, 0x7f000000')
    s(f's_mov_b32 {sC}, 0x3e0293ee'); s(f's_mov_b32 {sT}, {OPT["thr"]}'); s(f's_mov_b32 {sIT}, -1')
    rot=OPT.get('rot','0')=='1'
    s(f's_mov_b32 s49, {"0x1000000" if rot else hex(0x4000+JUMP)}'); s(f's_mov_b32 s50, {"0" if rot else "0x4000"}'); s('s_cmp_ge_u32 s34, 2'); s(f's_cselect_b32 {dK4}, s49, s50'); s(f's_cselect_b32 {dK5}, s50, s49')
    e.append(valu('v_mov_b32',v(VX),'0'))
    e.append(wait('s_waitcnt lgkmcnt(0)'))
    for srd,src in((4,36),(8,38),(12,40),(16,42)):
        s(f's_mov_b32 s{srd}, s{src}'); s(f's_and_b32 s{srd+1}, s{src+1}, 0xffff'); s(f's_mov_b32 s{srd+2}, 0x4000000'); s(f's_mov_b32 s{srd+3}, 0x20000')
    s(f's_lshl_b32 s46, s34, 13'); s(f's_add_u32 s46, s46, {VRING+4*8192}')
    for g in range(2):
        pre,d_=q_dma(0,g); e+=pre+[nop(0)]+d_
    for g in range(2):
        pre,d_=q_dma(1,g,'s46'); e+=pre+[nop(0)]+d_
    s('s_and_b32 s47, s34, 1'); s('s_lshl_b32 s47, s47, 7')
    e+=[nop(0),valu('v_xor_b32','v5','s47',v(KD[0])),valu('v_xor_b32','v6','s47',v(KD[1]))]
    s('s_lshl_b32 s47, s34, 11'); s(f's_add_u32 {sTMP}, s35, s47'); s(f's_add_u32 {sTMP}, {sTMP}, s51'); e.append(salu(f's_add_u32 m0, s47, {KRING+kslot(0)*8192}',[],['m0'])); e.append(nop(0))
    e+=[dma('v5',SRDK,sTMP,0,'K0p',OPT['ntkv']),dma('v6',SRDK,sTMP,1024,'K0p',OPT['ntkv'])]
    s('s_lshr_b32 s47, s34, 1'); s('s_add_u32 s47, s47, 1'); s('s_lshl_b32 s47, s47, 13'); s('s_and_b32 s48, s34, 1'); s('s_lshl_b32 s48, s48, 12')
    s(f's_add_u32 {sKo}, s47, s48'); s(f's_add_u32 {sKo}, {sKo}, s51'); s(f's_and_b32 {sKo}, {sKo}, 0x1ffff'); s(f's_add_u32 {sVo}, {sW4}, s51')
    s(f's_mov_b32 {sKb}, s35'); s(f's_mov_b32 {sVb}, s35')
    if not rot: s(f's_add_u32 {sK}, {sKb}, {sKo}'); s(f's_add_u32 {sV}, {sVb}, {sVo}')
    for Tp in(5,6):
        for fn,reg in((k_dma,sK),(v_dma,sV)):
            pre,d_=fn(Tp)
            e+= (pre[-2 if rot else -1:] if Tp==5 else pre)+[nop(0)]+d_
    e.append(wait('s_waitcnt vmcnt(16)'))
    e+=stamp()
    for blk,base in((0,sQS),(1,'s46')):
        for x in q_reads(blk,base): e+=x
        e.append(wait('s_waitcnt lgkmcnt(0)'))
    e.append(I('s_barrier','bar'))
    e+=k_reads(0)
    for fn in(k_dma,v_dma):
        pre,d_=fn(7); e+=pre+[nop(0)]+d_
    e.append(wait('s_waitcnt lgkmcnt(0)'))
    e+=qk_mfmas(0,True)
    e+=[wait('s_waitcnt vmcnt(16)')]
    return e,None,None
def main():
    ph=build_loop()
    epi=epilogue()
    top=[label('LOOP')]+stamp()+[salu(f's_cmp_lt_i32 {sIT}, 0'),I('s_cbranch_scc1 SKIP','salu')]
    mid=[label('AFTER')]+stamp()+[salu(f's_add_u32 {sIT}, {sIT}, 1'),salu(f's_cmp_eq_u32 {sIT}, 4'),I('s_cbranch_scc1 FIN','salu'),
         salu(f's_add_u32 {sQ}, {sQ}, 0x1000000',[sQ],[sQ])]
    mid.insert(len(mid)-1,salu(f's_mov_b32 {sO}, {sQ}',[sQ],[sO]))
    body=[]
    for j in range(16):
        body+=ph[('X',j)]+ph[('Y',j)]
    cyc=top+epi+mid+body
    fix_hazards(cyc)
    fix_vmcnt(cyc)
    pro,mY,eY=prologue()
    y15=[i for i in ph[('Y',15)] if i.k!='mfma']
    rl_t={o.t for o in rl_ops()}
    drop=lambda i: (i.w&{v(L[0]),v(L[1]),v(S(1,0)),v(S(1,0)+1)}) and i.k in('valu','trans')
    y15p=[nop(7),nop(7)]+[I(i.t,i.k,i.r,i.w,i.c,i.tag) for i in y15 if not drop(i)]
    skip=[label('SKIP')]+[store('v[0:3]',v(VX),SRDO,sO,0) for _ in range(16)]+[I('s_branch AFTER','salu')]
    allc=pro+y15p+[I('s_branch LOOP','salu')]
    errs=check_hazards(pro+y15p,'pro')+check_hazards(cyc+cyc[:60],'loop')
    rr=[]
    for j in range(1,16):
        r=rare(j); errs+=check_hazards(r,f'rare{j}'); rr+=r
    for x in errs: print('HAZARD',x,file=sys.stderr)
    txt=[]
    hdr=open('standalone__gqa_softmax__near_ridge.s.ref').read().split('\n')
    for l in hdr[:11]:
        if l.startswith('; @launch'): l='; @launch grid=(256,1,1) block=(256,1,1) lds=163840'
        if l.startswith(';'): txt.append(l)
    N='standalone__gqa_softmax__near_ridge_kernel'
    txt+=['.amdgcn_target "amdgcn-amd-amdhsa--gfx950"','.text',f'.globl {N}','.p2align 8',f'.type {N},@function',f'{N}:']
    def emit(seq):
        for i in seq:
            if OPT.get('nocomp')=='1' and (i.k in('mfma','trans') or (i.k=='valu' and ('fma' in i.t or 'cvt' in i.t or 'v_add_f32' in i.t or 'pk_mul' in i.t or 'max' in i.t or 'accvgpr' in i.t))): continue
            if OPT.get('nocomp')=='1' and OPT.get('nolds')=='1' and i.k in('dsr','dsw'): continue
            if OPT.get('nords')=='1' and i.k=='dsr' and seq is cyc: continue
            if OPT.get('noexp')=='1' and i.k=='trans' and seq is cyc: continue
            if OPT.get('novalu')=='1' and i.k in('trans','valu') and seq is cyc and 'cmp' not in i.t: continue
            if OPT.get('nobar')=='1' and i.k=='bar' and seq is cyc: continue
            if OPT.get('nodma')=='1' and i.k=='dma' and i.tag!='K0p': continue
            if OPT.get('nost')=='1' and i.k=='store' and i.tag=='st': continue
            txt.append(i.t if i.k=='label' else '  '+i.t)
    emit(allc);
    txt.append('.p2align 6'); emit(cyc); txt.append('  s_branch LOOP')
    emit([I(f'v_mov_b32 {v(VX)}, 0','valu')] and []); emit(skip); emit(rr)
    txt.append('FIN:'); emit([wait('s_waitcnt vmcnt(0)')]+stamp()+stamp(True)+dump() if OPT.get('dbg')=='1' else [])
    txt+=['DONE:','  s_endpgm','.section .rodata,"a"','.p2align 6',f'.amdhsa_kernel {N}','  .amdhsa_next_free_vgpr 448','  .amdhsa_next_free_sgpr 96',
          '  .amdhsa_accum_offset 256','  .amdhsa_group_segment_fixed_size 0','  .amdhsa_kernarg_size 48','  .amdhsa_user_sgpr_count 2',
          '  .amdhsa_user_sgpr_kernarg_segment_ptr 1','  .amdhsa_system_sgpr_workgroup_id_x 1','.end_amdhsa_kernel','']
    open(sys.argv[1],'w').write('\n'.join(txt))
    nm=sum(1 for i in cyc if i.k=='mfma'); print('over',OVER,sum(OVER),file=sys.stderr); print('loop instrs',len(cyc),'mfma',nm,'cost units',sum(i.c for i in cyc), [i.t for i in cyc if i.k=='wait' and i.tag],file=sys.stderr)
main()
```
